```python
import torch

def _softmax(x, axis=-1):
    return torch.softmax(x, dim=axis)

def _gelu(x):
    return torch.nn.functional.gelu(x, approximate='tanh')

def _silu(x):
    return torch.nn.functional.silu(x)

def _sigmoid(x):
    return torch.sigmoid(x)

def _layernorm(x, axis=-1, eps=1e-05):
    m = x.mean(dim=axis, keepdim=True)
    v = x.var(dim=axis, keepdim=True, unbiased=False)
    return (x - m) / torch.sqrt(v + eps)

def _scatter_add(tgt, idx, src, axis=0):
    return tgt.clone().index_add_(axis, idx, src)

def _segment_sum(src, seg, n):
    out = torch.zeros((n,) + src.shape[1:], dtype=src.dtype)
    return out.index_add_(0, seg, src)

def _pad(x, pw):
    flat = tuple((v for pair in reversed(pw) for v in pair))
    return torch.nn.functional.pad(x, flat)
kernel_name = 'sequential_preLN__linear_kernel_hedgehog__mixer_gmlp__prompt'

def setup_inputs():

    _w = lambda a: (lambda t: t.to(torch.bfloat16) if t.is_floating_point() else t)(torch.as_tensor(a))

    def _A_setup():
        B, S, D, H = (1, 2048, 512, 32)
        Dh = D // H
        return {'x': _w((lambda *s: torch.randn(*s, dtype=torch.bfloat16) * 0.05)(B, S, D)), 'wqkv': _w((lambda *s: torch.randn(*s, dtype=torch.bfloat16) * 0.2)(D, 3 * D)), 'w_phi': _w((lambda *s: torch.randn(*s, dtype=torch.bfloat16) * 0.2)(H, Dh, Dh) * Dh ** (-0.5)), 'wo': _w((lambda *s: torch.randn(*s, dtype=torch.bfloat16) * 0.05)(D, D))}
    _A_in = _A_setup()

    def _B_setup():
        B, S, D, F = (1, 2048, 512, 1792)
        Fh = F // 2
        return {'x': _w((lambda *s: torch.randn(*s, dtype=torch.bfloat16) * 0.05)(B, S, D)), 'w_in': _w((lambda *s: torch.randn(*s, dtype=torch.bfloat16) * 0.2)(D, 2 * Fh)), 'w_sp': _w(0.01 * (lambda *s: torch.randn(*s, dtype=torch.bfloat16) * 0.2)(S, S)), 'b_sp': _w(1.0 + 0.01 * (lambda *s: torch.randn(*s, dtype=torch.bfloat16) * 0.05)(S)), 'w_out': _w((lambda *s: torch.randn(*s, dtype=torch.bfloat16) * 0.05)(Fh, D))}
    _B_in = _B_setup()
    return {'A_x': _A_in['x'], 'A_wqkv': _A_in['wqkv'], 'A_w_phi': _A_in['w_phi'], 'A_wo': _A_in['wo'], 'B_x': _B_in['x'], 'B_w_in': _B_in['w_in'], 'B_w_sp': _B_in['w_sp'], 'B_b_sp': _B_in['b_sp'], 'B_w_out': _B_in['w_out']}

def reference(A_x, A_wqkv, A_w_phi, A_wo, B_x, B_w_in, B_w_sp, B_b_sp, B_w_out):

    def _A_ref(x, wqkv, w_phi, wo):
        B, S, D = x.shape
        H = 32
        Dh = D // H
        qkv = (lambda x, *d: x.permute(*d))((x @ wqkv).reshape(B, S, 3, H, Dh), 2, 0, 3, 1, 4)
        q, k, v = (qkv[0], qkv[1], qkv[2])
        pq = torch.einsum('bhsd,hdf->bhsf', q, w_phi)
        pk = torch.einsum('bhsd,hdf->bhsf', k, w_phi)
        phi_q = torch.concatenate([_softmax(pq, axis=-1), _softmax(-pq, axis=-1)], axis=-1)
        phi_k = torch.concatenate([_softmax(pk, axis=-1), _softmax(-pk, axis=-1)], axis=-1)
        kv = torch.einsum('bhsf,bhsd->bhfd', phi_k, v)
        z = torch.einsum('bhsf->bhf', phi_k)
        num = torch.einsum('bhqf,bhfd->bhqd', phi_q, kv)
        den = torch.einsum('bhqf,bhf->bhq', phi_q, z)[..., None] + 1e-06
        o = num / den
        return (lambda x, *d: x.permute(*d))(o, 0, 2, 1, 3).reshape(B, S, D) @ wo

    def _B_ref(x, w_in, w_sp, b_sp, w_out):
        B, S, D = x.shape
        F = w_in.shape[-1]
        Fh = F // 2
        z = _gelu(torch.einsum('bsd,df->bsf', x, w_in))
        z1 = z[..., :Fh].clone()
        z2 = _layernorm(z[..., Fh:], axis=-1)
        g = torch.einsum('ts,bsf->btf', w_sp, z2) + b_sp[None, :, None]
        return torch.einsum('bsf,fd->bsd', z1 * g, w_out)
    x = A_x
    h = x + _A_ref(_layernorm(x, axis=-1), A_wqkv, A_w_phi, A_wo)
    h2 = h + _B_ref(_layernorm(h, axis=-1), B_w_in, B_w_sp, B_b_sp, B_w_out)
    return h2
```

```python
NAME = "sequential_preLN__linear_kernel_hedgehog__mixer_gmlp__prompt"

class Asm:
    def __init__(self):
        self.lines = []
        self.uid = 0
    def __call__(self, s=""):
        for l in s.split("\n"):
            self.lines.append(l)
    def label(self, base="L"):
        self.uid += 1
        return "%s_%d" % (base, self.uid)
    def text(self):
        return "\n".join(self.lines) + "\n"

def wrap(body, grid=256, block=256, lds=0, vgpr=512, accum=256, sgpr=102, name=NAME + "_kernel", header=""):
    return f"""{header}; @launch grid=({grid},1,1) block=({block},1,1) lds={lds}
.amdgcn_target "amdgcn-amd-amdhsa--gfx950"
.text
.globl {name}
.p2align 8
.type {name},@function
{name}:
{body}
.section .rodata,"a"
.p2align 6
.amdhsa_kernel {name}
  .amdhsa_next_free_vgpr {vgpr}
  .amdhsa_next_free_sgpr {sgpr}
  .amdhsa_accum_offset {accum}
  .amdhsa_group_segment_fixed_size 0
  .amdhsa_kernarg_size 96
  .amdhsa_user_sgpr_count 2
  .amdhsa_user_sgpr_kernarg_segment_ptr 1
  .amdhsa_system_sgpr_workgroup_id_x 1
  .amdhsa_float_denorm_mode_32 3
.end_amdhsa_kernel
"""
```

```python
import sys
from asmlib import Asm
HDR = open("sequential_preLN__linear_kernel_hedgehog__mixer_gmlp__prompt.s.ref").read().split("; Override")[0]
MB = 1 << 20
XN, QKV, PHI, KV, O, H, HN, Z, Z2N, WSP, U = [x * MB for x in (0, 4, 16, 32, 33, 37, 41, 45, 60, 64, 80)]
kernels = []
launches = []
def kern(name, body, grid, block=256):
    kernels.append((name, body))
    launches.append((name, grid, block))

def srd(a, r, base, off, size):
    a(f"s_add_u32 s{r}, s{base}, {off}\ns_addc_u32 s{r+1}, s{base+1}, 0\ns_mov_b32 s{r+2}, {size}\ns_mov_b32 s{r+3}, 0x20000")

def prolog(a, name, nwg):
    a(f"""s_cmp_ge_u32 s2, {nwg}
s_cbranch_scc1 L_end_{name}
s_load_dwordx16 s[64:79], s[0:1], 0
s_load_dwordx8 s[80:87], s[0:1], 64
s_waitcnt lgkmcnt(0)""")
def wave_sum(a, v, t):
    for off in (0x041F, 0x081F, 0x101F, 0x201F, 0x401F):
        a(f"ds_swizzle_b32 v{t}, v{v} offset:{off}\ns_waitcnt lgkmcnt(0)\nv_add_f32 v{v}, v{v}, v{t}")
    a(f"s_nop 1\nv_readlane_b32 s40, v{v}, 0\nv_readlane_b32 s41, v{v}, 32\ns_nop 1\nv_mov_b32 v{v}, s40\nv_add_f32 v{v}, s41, v{v}")

def ln(name, src_base, src_off, src_bf16, pitch, n, dst_off, dst_bf16):
    a = Asm(); prolog(a, name, 2048)
    per = n // 64
    srd(a, 8, src_base, src_off, 0x4000000)
    srd(a, 12, 86, dst_off, 0x4000000)
    es = 2 if src_bf16 else 4
    a(f"s_mul_i32 s3, s2, {pitch*es}\nv_lshlrev_b32 v1, {es//2}, v0")
    for i in range(per):
        if src_bf16:
            a(f"buffer_load_ushort v{10+i}, v1, s[8:11], s3 offen offset:{i*64*es}")
        else:
            a(f"buffer_load_dword v{10+i}, v1, s[8:11], s3 offen offset:{i*64*es}")
    a("s_waitcnt vmcnt(0)\nv_mov_b32 v2, 0")
    for i in range(per):
        if src_bf16: a(f"v_lshlrev_b32 v{10+i}, 16, v{10+i}")
        a(f"v_add_f32 v2, v2, v{10+i}")
    wave_sum(a, 2, 3)
    a(f"v_mul_f32 v2, {1.0/n!r}, v2\nv_mov_b32 v4, 0")
    for i in range(per):
        a(f"v_sub_f32 v{10+i}, v{10+i}, v2\nv_fmac_f32 v4, v{10+i}, v{10+i}")
    wave_sum(a, 4, 3)
    a(f"v_mul_f32 v4, {1.0/n!r}, v4\nv_add_f32 v4, 1e-5, v4\nv_rsq_f32 v4, v4\ns_nop 1")
    ed = 2 if dst_bf16 else 4
    a(f"s_mul_i32 s3, s2, {n*ed}\nv_lshlrev_b32 v1, {ed//2}, v0")
    for i in range(per):
        a(f"v_mul_f32 v{10+i}, v{10+i}, v4")
        if dst_bf16:
            a(f"v_cvt_pk_bf16_f32 v{10+i}, v{10+i}, v{10+i}\nbuffer_store_short v{10+i}, v1, s[12:15], s3 offen offset:{i*64*ed}")
        else:
            a(f"buffer_store_dword v{10+i}, v1, s[12:15], s3 offen offset:{i*64*ed}")
    a(f"L_end_{name}:\ns_endpgm")
    kern(name, a.text(), 2048, 64)

def gemm(name, a_off, K, b_base, b_off, N, epi):
    R = 4
    nb = N // 128
    a = Asm(); prolog(a, name, 512 * nb)
    a(f"s_and_b32 s4, s2, 511\ns_lshr_b32 s5, s2, 9")
    srd(a, 8, b_base, b_off, K * N * 2)
    a(f"s_mul_i32 s6, s4, {R*K*4}\ns_add_u32 s6, s6, {a_off}\ns_add_u32 s16, s86, s6\ns_addc_u32 s17, s87, 0")
    a(f"s_lshl_b32 s7, s5, 8\nv_lshlrev_b32 v1, 2, v0\nv_add_u32 v1, s7, v1")
    for i in range(2 * R): a(f"v_mov_b32 v{40+i}, 0")
    a(f"s_mov_b32 s18, 0\ns_mov_b32 s19, 0\nL_k_{name}:")
    for r in range(R):
        a(f"s_load_dwordx8 s[{24+8*r}:{31+8*r}], s[16:17], {r*K*4}")
    for k in range(8):
        a(f"buffer_load_dword v{10+k}, v1, s[8:11], s19 offen\ns_add_u32 s19, s19, {N*2}")
    a("s_waitcnt vmcnt(0) lgkmcnt(0)")
    for k in range(8):
        a(f"v_lshlrev_b32 v20, 16, v{10+k}\nv_and_b32 v21, 0xffff0000, v{10+k}")
        for r in range(R):
            a(f"v_fmac_f32 v{40+2*r}, s{24+8*r+k}, v20\nv_fmac_f32 v{41+2*r}, s{24+8*r+k}, v21")
    a(f"s_add_u32 s16, s16, 32\ns_addc_u32 s17, s17, 0\ns_add_u32 s18, s18, 8\ns_cmp_lt_u32 s18, {K}\ns_cbranch_scc1 L_k_{name}")
    epi(a, R, N)
    a(f"L_end_{name}:\ns_endpgm")
    kern(name, a.text(), 512 * nb, 64)

def rnd(a, v):
    a(f"v_cvt_pk_bf16_f32 v{v}, v{v}, v{v}\nv_lshlrev_b32 v{v}, 16, v{v}")
def store_f32(a, R, N, off):
    srd(a, 12, 86, off, 0x4000000)
    a("v_lshlrev_b32 v2, 1, v1")
    for r in range(R):
        a(f"s_mul_i32 s20, s4, {R*N*4}\ns_add_u32 s20, s20, {r*N*4}\nbuffer_store_dwordx2 v[{40+2*r}:{41+2*r}], v2, s[12:15], s20 offen")
def epi_qkv(a, R, N):
    for i in range(2*R): rnd(a, 40+i)
    store_f32(a, R, N, QKV)
def epi_h(a, R, N):
    srd(a, 12, 64, 0, 2048*512*2)
    for r in range(R):
        a(f"s_mul_i32 s20, s4, {R*N*2}\ns_add_u32 s20, s20, {r*N*2}\nbuffer_load_dword v10, v1, s[12:15], s20 offen\ns_waitcnt vmcnt(0)")
        a(f"v_lshlrev_b32 v20, 16, v10\nv_and_b32 v21, 0xffff0000, v10\nv_add_f32 v{40+2*r}, v{40+2*r}, v20\nv_add_f32 v{41+2*r}, v{41+2*r}, v21")
    for i in range(2*R): rnd(a, 40+i)
    store_f32(a, R, N, H)
def epi_gelu(a, R, N):
    c1 = -2 * 0.7978845608028654 * 1.4426950408889634
    for i in range(2*R):
        v = 40 + i
        a(f"""v_mul_f32 v20, v{v}, v{v}
v_mul_f32 v20, 0.044715, v20
v_add_f32 v20, 1.0, v20
v_mul_f32 v20, v20, v{v}
v_mul_f32 v20, {c1!r}, v20
v_exp_f32 v20, v20
s_nop 1
v_add_f32 v20, 1.0, v20
v_rcp_f32 v20, v20
s_nop 1
v_mul_f32 v{v}, v{v}, v20""")
        rnd(a, v)
    store_f32(a, R, N, Z)
def epi_u(a, R, N):
    srd(a, 12, 86, Z, 0x4000000)
    a("v_lshlrev_b32 v2, 1, v1\ns_lshl_b32 s20, s4, 3\ns_add_u32 s22, s78, s20\ns_addc_u32 s23, s79, 0\ns_load_dwordx2 s[24:25], s[22:23], 0\ns_waitcnt lgkmcnt(0)")
    for r in range(R):
        if r % 2 == 0: a(f"s_lshl_b32 s21, s{24+r//2}, 16")
        else: a(f"s_and_b32 s21, s{24+r//2}, 0xffff0000")
        a(f"s_mul_i32 s20, s4, {R*1792*4}\ns_add_u32 s20, s20, {r*1792*4}\nbuffer_load_dwordx2 v[10:11], v2, s[12:15], s20 offen\ns_waitcnt vmcnt(0)")
        a(f"v_add_f32 v{40+2*r}, s21, v{40+2*r}\nv_add_f32 v{41+2*r}, s21, v{41+2*r}\nv_mul_f32 v{40+2*r}, v{40+2*r}, v10\nv_mul_f32 v{41+2*r}, v{41+2*r}, v11")
    for i in range(2*R): rnd(a, 40+i)
    store_f32(a, R, N, U)
def epi_out(a, R, N):
    srd(a, 12, 86, H, 0x4000000)
    srd(a, 56, 82, 0, 2048*512*2)
    a("v_lshlrev_b32 v2, 1, v1")
    for r in range(R):
        a(f"s_mul_i32 s20, s4, {R*N*4}\ns_add_u32 s20, s20, {r*N*4}\nbuffer_load_dwordx2 v[10:11], v2, s[12:15], s20 offen\ns_waitcnt vmcnt(0)")
        a(f"v_add_f32 v{40+2*r}, v{40+2*r}, v10\nv_add_f32 v{41+2*r}, v{41+2*r}, v11\nv_cvt_pk_bf16_f32 v12, v{40+2*r}, v{41+2*r}")
        a(f"s_lshr_b32 s20, s20, 1\nbuffer_store_dword v12, v1, s[56:59], s20 offen\ns_waitcnt vmcnt(0)")

def phi():
    name = "phi_kernel"
    a = Asm(); prolog(a, name, 32 * 32 * 2)
    a("s_and_b32 s4, s2, 31\ns_lshr_b32 s5, s2, 5\ns_and_b32 s5, s5, 31\ns_lshr_b32 s6, s2, 10")
    srd(a, 8, 86, QKV, 0x4000000); srd(a, 12, 86, PHI, 0x4000000)
    a(f"s_lshl_b32 s7, s4, 6\nv_add_u32 v1, s7, v0\nv_mul_u32_u24 v2, {1536*4}, v1\ns_lshl_b32 s7, s5, 6\ns_lshl_b32 s16, s6, 11\ns_add_u32 s7, s7, s16")
    for i in range(4): a(f"buffer_load_dwordx4 v[{12+4*i}:{15+4*i}], v2, s[8:11], s7 offen offset:{16*i}")
    a("s_lshl_b32 s16, s5, 9\ns_add_u32 s16, s68, s16\ns_addc_u32 s17, s69, 0")
    for f in range(16): a(f"v_mov_b32 v{32+f}, 0")
    a("s_waitcnt vmcnt(0)")
    for d in range(16):
        a(f"s_load_dwordx8 s[24:31], s[16:17], {32*d}\ns_waitcnt lgkmcnt(0)")
        for f in range(16):
            if f % 2 == 0: a(f"s_lshl_b32 s21, s{24+f//2}, 16")
            else: a(f"s_and_b32 s21, s{24+f//2}, 0xffff0000")
            a(f"v_fmac_f32 v{32+f}, s21, v{12+d}")
    for f in range(16): rnd(a, 32+f)
    for sgn in range(2):
        if sgn:
            for f in range(16): a(f"v_sub_f32 v{32+f}, 0, v{32+f}")
        a("v_mov_b32 v3, v32")
        for f in range(1, 16): a(f"v_max_f32 v3, v3, v{32+f}")
        a("v_mov_b32 v4, 0")
        for f in range(16):
            o = 48 + 16*sgn + f
            a(f"v_sub_f32 v{o}, v{32+f}, v3\nv_mul_f32 v{o}, 1.4426950408889634, v{o}\nv_exp_f32 v{o}, v{o}\ns_nop 1\nv_add_f32 v4, v4, v{o}")
        a("v_rcp_f32 v4, v4\ns_nop 1")
        for f in range(16):
            o = 48 + 16*sgn + f
            a(f"v_mul_f32 v{o}, v{o}, v4"); rnd(a, o)
    a(f"v_lshlrev_b32 v2, 12, v1\ns_lshl_b32 s7, s5, 7\ns_lshl_b32 s16, s6, 23\ns_add_u32 s7, s7, s16")
    for i in range(8): a(f"buffer_store_dwordx4 v[{48+4*i}:{51+4*i}], v2, s[12:15], s7 offen offset:{16*i}")
    a(f"L_end_{name}:\ns_endpgm")
    kern(name, a.text(), 2048, 64)

def kvk():
    name = "kv_kernel"
    a = Asm(); prolog(a, name, 256)
    a("s_lshr_b32 s5, s2, 3\ns_and_b32 s4, s2, 7")
    srd(a, 8, 86, QKV + 1024*4, 0x4000000); srd(a, 12, 86, PHI + 8*MB, 0x4000000); srd(a, 56, 86, KV, 0x4000000)
    a("""v_and_b32 v1, 15, v0
v_lshrrev_b32 v2, 4, v0
s_lshl_b32 s6, s4, 2
v_add_u32 v2, s6, v2
s_lshl_b32 s6, s5, 4
v_add_u32 v3, s6, v1
v_lshlrev_b32 v3, 2, v3
s_lshl_b32 s6, s5, 5
v_add_u32 v4, s6, v2
v_lshlrev_b32 v5, 7, v4
v_lshlrev_b32 v4, 2, v4
v_mov_b32 v6, 0
v_mov_b32 v7, 0
s_mov_b32 s16, 0
s_mov_b32 s17, 0
L_kv:""")
    for i in range(16):
        a(f"buffer_load_dword v{10+i}, v3, s[8:11], s16 offen\nbuffer_load_dword v{30+i}, v4, s[12:15], s17 offen\ns_add_u32 s16, s16, {1536*4}\ns_add_u32 s17, s17, 4096")
    a("s_waitcnt vmcnt(0)")
    for i in range(16): a(f"v_fmac_f32 v6, v{10+i}, v{30+i}\nv_add_f32 v7, v7, v{30+i}")
    a(f"s_cmp_lt_u32 s17, {2048*4096}\ns_cbranch_scc1 L_kv")
    rnd(a, 6); rnd(a, 7)
    a("v_lshlrev_b32 v1, 2, v1\nv_add_u32 v5, v5, v1\nbuffer_store_dword v6, v5, s[56:59], 0 offen\nbuffer_store_dword v7, v5, s[56:59], 0 offen offset:64")
    a(f"L_end_{name}:\ns_endpgm")
    kern(name, a.text(), 256, 64)

def ok():
    name = "o_kernel"
    a = Asm(); prolog(a, name, 2048 * 8)
    a("s_lshr_b32 s5, s2, 3\ns_and_b32 s4, s2, 7")
    srd(a, 8, 86, KV, 0x4000000); srd(a, 12, 86, PHI, 0x4000000); srd(a, 56, 86, O, 0x4000000)
    a("""v_and_b32 v1, 15, v0
v_lshrrev_b32 v2, 4, v0
s_lshl_b32 s6, s4, 2
v_add_u32 v2, s6, v2
v_lshlrev_b32 v3, 12, v2
v_lshlrev_b32 v4, 2, v1
v_add_u32 v3, v3, v4
v_lshlrev_b32 v4, 7, v2
s_lshl_b32 s16, s5, 12
v_mov_b32 v6, 0
v_mov_b32 v7, 0""")
    for i in range(8): a(f"buffer_load_dwordx4 v[{12+4*i}:{15+4*i}], v4, s[12:15], s16 offen offset:{16*i}")
    for f in range(32): a(f"buffer_load_dword v{48+f}, v3, s[8:11], 0 offen offset:{128*f}\nbuffer_load_dword v{80+f}, v3, s[8:11], 0 offen offset:{128*f+64}")
    a("s_waitcnt vmcnt(0)")
    for f in range(32): a(f"v_fmac_f32 v6, v{12+f}, v{48+f}\nv_fmac_f32 v7, v{12+f}, v{80+f}")
    a("v_add_f32 v7, 1e-6, v7\nv_rcp_f32 v7, v7\ns_nop 1\nv_mul_f32 v6, v6, v7")
    rnd(a, 6)
    a("s_lshl_b32 s16, s2, 8\nv_lshlrev_b32 v1, 2, v0\nbuffer_store_dword v6, v1, s[56:59], s16 offen")
    a(f"L_end_{name}:\ns_endpgm")
    kern(name, a.text(), 2048 * 8, 64)

def cvt():
    name = "cvt_kernel"
    a = Asm(); prolog(a, name, 8192)
    srd(a, 8, 76, 0, 8*MB); srd(a, 12, 86, WSP, 16*MB)
    a("""s_lshl_b32 s3, s2, 10
v_lshlrev_b32 v1, 2, v0
buffer_load_dword v2, v1, s[8:11], s3 offen
s_waitcnt vmcnt(0)
v_lshlrev_b32 v4, 16, v2
v_and_b32 v5, 0xffff0000, v2
v_lshlrev_b32 v1, 3, v0
s_lshl_b32 s3, s2, 11
buffer_store_dwordx2 v[4:5], v1, s[12:15], s3 offen""")
    a(f"L_end_{name}:\ns_endpgm")
    kern(name, a.text(), 8192, 256)

def build(pre=None, post=None):
    kernels.clear(); launches.clear()
    if pre: pre()
    ln("ln1_kernel", 64, 0, True, 512, 512, XN, False)
    gemm("g1_kernel", XN, 512, 66, 0, 1536, epi_qkv)
    phi(); kvk(); ok()
    gemm("g2_kernel", O, 512, 70, 0, 512, epi_h)
    ln("ln2_kernel", 86, H, False, 512, 512, HN, False)
    gemm("g3_kernel", HN, 512, 74, 0, 1792, epi_gelu)
    ln("ln3_kernel", 86, Z + 896*4, False, 1792, 896, Z2N, True)
    cvt()
    gemm("g4_kernel", WSP, 2048, 86, Z2N, 896, epi_u)
    gemm("g5_kernel", U, 896, 80, 0, 512, epi_out)
    if post: post()
    out = HDR
    for n, g, b in launches: out += f"; @launch kernel={n} grid=({g},1,1) block=({b},1,1) lds=0\n"
    out += '.amdgcn_target "amdgcn-amd-amdhsa--gfx950"\n.text\n'
    seen = []
    for n, body in kernels:
        if n in seen: continue
        seen.append(n)
        out += f".globl {n}\n.p2align 8\n.type {n},@function\n{n}:\n{body}\n"
    out += '.section .rodata,"a"\n'
    for n in seen:
        out += f""".p2align 6
.amdhsa_kernel {n}
  .amdhsa_next_free_vgpr 128
  .amdhsa_next_free_sgpr 102
  .amdhsa_accum_offset 128
  .amdhsa_group_segment_fixed_size 0
  .amdhsa_kernarg_size 96
  .amdhsa_user_sgpr_count 2
  .amdhsa_user_sgpr_kernarg_segment_ptr 1
  .amdhsa_system_sgpr_workgroup_id_x 1
.end_amdhsa_kernel
"""
    return out

def probe(base, n, stride, off=0):
    def f():
        name = "probe_kernel"
        a = Asm(); prolog(a, name, 1)
        srd(a, 8, base, off, n * stride + 64)
        a(f"""v_mov_b32 v1, 0
s_mov_b32 s16, 0
L_probe:
buffer_load_dword v2, v1, s[8:11], s16 offen
s_waitcnt vmcnt(0)
s_add_u32 s16, s16, {stride}
s_cmp_lt_u32 s16, {n*stride}
s_cbranch_scc1 L_probe""")
        a(f"L_end_{name}:\ns_endpgm")
        kern(name, a.text(), 1, 64)
    return f
def empties(n, grid=256):
    def f():
        for i in range(n):
            kern("empty_kernel", "s_endpgm", grid, 256)
    return f

if __name__ == "__main__":
    open("naive_base.s", "w").write(build())
    open("naive_e40.s", "w").write(build(pre=empties(40)))
    open("naive_pbx.s", "w").write(build(pre=probe(72, 2000, 1024)))
    open("naive_pwsp.s", "w").write(build(pre=probe(76, 2000, 4096)))
    open("naive_px.s", "w").write(build(pre=probe(64, 2000, 1024)))
    open("naive_pws.s", "w").write(build(pre=probe(86, 2000, 4096, 128*MB)))
```

```python
from naive import *
def stream(mb):
    def f():
        name = "stream_kernel"
        nwg = mb * 32
        a = Asm(); prolog(a, name, nwg)
        srd(a, 8, 86, 128*MB, 128*MB)
        a("s_lshl_b32 s16, s2, 15\nv_lshlrev_b32 v1, 4, v0")
        for i in range(8):
            a(f"buffer_load_dwordx4 v[{4+4*i}:{7+4*i}], v1, s[8:11], s16 offen\ns_add_u32 s16, s16, 4096")
        a("s_waitcnt vmcnt(0)")
        a(f"L_end_{name}:\ns_endpgm")
        kern(name, a.text(), nwg, 256)
    return f
open("naive_s8.s", "w").write(build(pre=stream(8)))
open("naive_s32.s", "w").write(build(pre=stream(32)))
open("naive_s64.s", "w").write(build(pre=stream(64)))
open("naive_s128.s", "w").write(build(pre=stream(128)))
open("naive_e1.s", "w").write(build(pre=empties(1)))
```

```python
import re

_REG = re.compile(r"^(-|abs\()?([vas])(\d+|\[(\d+):(\d+)\])\)?$")
def regs_of(tok):
    tok = tok.strip()
    if tok in ("vcc", "vcc_lo", "vcc_hi"): return {("s", "vcc")}
    if tok in ("exec", "exec_lo", "exec_hi"): return {("s", "exec")}
    if tok == "m0": return {("s", "m0")}
    m = _REG.match(tok)
    if not m: return set()
    f = m.group(2)
    if m.group(4) is not None:
        return {(f, i) for i in range(int(m.group(4)), int(m.group(5)) + 1)}
    return {(f, int(m.group(3)))}

TRANS = ("v_exp_f32", "v_log_f32", "v_rcp_f32", "v_rsq_f32", "v_sqrt_f32", "v_sin_f32", "v_cos_f32")
class Ins:
    def __init__(self, text):
        self.text = text
        t = text.split(";")[0].strip()
        self.is_label = t.endswith(":")
        self.is_dir = t.startswith(".") and not self.is_label
        self.empty = (t == "")
        self.op = ""; self.ops = []
        self.dst = set(); self.src = set()
        self.kind = None
        if self.is_label or self.is_dir or self.empty: return
        parts = t.split(None, 1)
        op = parts[0]
        for suf in ("_e32", "_e64"):
            if op.endswith(suf): op = op[:-4]
        self.op = op
        rest = parts[1] if len(parts) > 1 else ""
        ops = []; depth = 0; cur = ""
        for ch in rest:
            if ch in "[(": depth += 1
            if ch in "])": depth -= 1
            if ch == "," and depth == 0:
                ops.append(cur.strip()); cur = ""
            else: cur += ch
        if cur.strip(): ops.append(cur.strip())
        self.mods = ""
        if ops:
            last = ops[-1].split(None, 1)
            ops[-1] = last[0]
            self.mods = last[1] if len(last) > 1 else ""
        self.ops = ops
        R = [regs_of(o) for o in ops]
        U = lambda l: set().union(*l) if l else set()
        if op.startswith("v_mfma"):
            self.kind = "mfma"; self.dst = R[0]; self.A = R[1]; self.B = R[2]; self.C = R[3]
            self.src = R[1] | R[2] | R[3]
            self.passes = 8 if "32x32" in op else 4
        elif op.startswith("v_"):
            self.kind = "valu"
            self.dst = set(R[0]); self.src = U(R[1:])
            if "permlane" in op and "swap" in op:
                self.dst = R[0] | R[1]; self.src = R[0] | R[1]
            if op.startswith(("v_fmac", "v_dot2c", "v_writelane")): self.src |= R[0]
            if op.startswith(("v_add_co", "v_sub_co", "v_addc_co")): self.dst |= R[1]
            if op.startswith("v_cmpx"): self.dst |= {("s", "exec")}
            self.trans = op in TRANS
            self.dl = op.startswith("v_dot")
            self.dpp = op.endswith("_dpp")
            self.sdwa = op.endswith("_sdwa")
        elif op.startswith("ds_"):
            self.kind = "ds"
            if op.startswith(("ds_read", "ds_swizzle", "ds_bpermute", "ds_permute")):
                self.dst = R[0]; self.src = U(R[1:])
            else: self.src = U(R)
        elif op.startswith(("buffer_", "global_")):
            self.kind = "vmem"
            self.lds = " lds" in (" " + self.mods) or "load_lds" in op
            self.wide_store = False
            if "load" in op and not self.lds:
                self.dst = R[0]; self.src = U(R[1:])
            else:
                self.src = U(R)
                if "store" in op and op.endswith(("x3", "x4")):
                    self.wide_store = True
                    self.data = R[0] if op.startswith("buffer_") else R[1]
                if "atomic" in op and "sc0" in self.mods: self.dst = R[0]
            if self.lds: self.src |= {("s", "m0")}
        elif op.startswith("s_"):
            self.kind = "salu"
            if op.startswith(("s_cmp", "s_bitcmp", "s_waitcnt", "s_nop", "s_barrier", "s_branch", "s_cbranch", "s_endpgm", "s_sleep", "s_setprio", "s_setpc")):
                self.src = U(R)
            else:
                self.dst = set(R[0]) if R else set(); self.src = U(R[1:])
                if "saveexec" in op: self.dst |= {("s", "exec")}
        else:
            raise ValueError("unknown instruction " + text)
    def states(self):
        if self.kind is None: return 0
        if self.op == "s_nop": return int(self.ops[0], 0) + 1
        return 1

def vonly(s): return {r for r in s if r[0] in "va"}
def sonly(s): return {r for r in s if r[0] == "s"}

def need(p, c):
    n = 0
    if p.kind == "valu":
        pv, ps = vonly(p.dst), sonly(p.dst)
        if c.kind == "mfma" and pv & c.src: n = max(n, 3 if p.dl else 2)
        if c.kind == "valu":
            if "permlane" in c.op and pv & c.src: n = max(n, 2)
            if c.dpp and pv & c.src: n = max(n, 2)
            if c.op.startswith(("v_readlane", "v_readfirstlane")) and pv & c.src: n = max(n, 1)
            if p.trans and not c.trans and pv & c.src: n = max(n, 1)
            if p.sdwa and pv & (c.src | c.dst): n = max(n, 1)
            if ps & c.src: n = max(n, 4 if c.op.startswith(("v_readlane", "v_writelane")) else 2)
            if c.op.startswith("v_cndmask") and ("s", "vcc") in ps and len(c.ops) < 4: n = max(n, 2)
            if p.dl and pv & (c.src | c.dst):
                if c.op == p.op and not (pv & set().union(*[regs_of(o) for o in c.ops[1:3]])): pass
                else: n = max(n, 3)
            if ("s", "exec") in ps: n = max(n, 5)
        if p.dl and c.kind in ("vmem", "ds") and pv & c.src: n = max(n, 3)
        if c.kind == "vmem" and ps & c.src: n = max(n, 5)
        if c.kind == "mfma" and ("s", "exec") in ps: n = max(n, 4)
        if c.kind == "salu" and ps & c.src: n = max(n, 1)
    elif p.kind == "mfma":
        big = {8: 12, 4: 8}[p.passes]
        if c.kind == "mfma":
            if p.dst & (c.A | c.B): n = max(n, big)
            if p.dst & c.C and not (p.dst == c.C and p.passes == c.passes): n = max(n, big - 2)
            if p.dst & c.dst and not (p.dst & c.C): n = max(n, big)
        elif c.kind == "valu":
            if p.dst & (c.src | c.dst): n = max(n, big)
            if vonly(p.C) & c.dst: n = max(n, p.passes - 1)
        elif c.kind in ("ds", "vmem"):
            if p.dst & (c.src | c.dst): n = max(n, big)
            if vonly(p.C) & c.dst: n = max(n, p.passes - 1)
    elif p.kind == "salu":
        if ("s", "m0") in p.dst and c.kind == "vmem" and c.lds: n = max(n, 1)
    elif p.kind == "vmem":
        if p.wide_store and p.data & c.dst: n = max(n, 2 if c.kind == "valu" else 1)
    return n

def pad_hazards(lines):
    out = []
    added = 0
    for text in lines:
        c = Ins(text)
        if c.kind is not None:
            dist = 0; lack = 0
            for p in reversed(out):
                if p.kind is None: continue
                if dist >= 13: break
                lack = max(lack, need(p, c) - dist)
                dist += p.states()
            if lack > 0:
                out.append(Ins(f"s_nop {lack-1}")); added += lack
        out.append(c)
    return [i.text for i in out], added

class K:
    def __init__(self):
        self.lines = []
        self.uid = 0
        self.vm = []
        self.lg = []
        self.bgq = []
    def __call__(self, s):
        for l in s.split("\n"):
            l = l.strip()
            if l: self.lines.append(l)
    def label(self, base):
        self.uid += 1
        return f"L_{base}_{self.uid}"
    def vmem(self, s, tag=None):
        self(s); self.vm.append(tag)
        assert len(self.vm) <= 62, "too many outstanding vmem ops"
    def ds(self, s, tag=None):
        self(s); self.lg.append(tag)
    def _cnt(self, q, tag):
        idx = [i for i, t in enumerate(q) if t == tag]
        if not idx: return None
        n = len(q) - 1 - idx[-1]
        del q[:idx[-1] + 1]
        return n
    def wait(self, vm=None, lg=None):
        parts = []
        while vm is not None and any(getattr(j, "tag", None) == vm for j in self.bgq):
            self.bgq.pop(0)()
        if vm == "all":
            if self.vm: parts.append("vmcnt(0)")
            self.vm.clear()
        elif vm is not None:
            n = self._cnt(self.vm, vm)
            if n is not None: parts.append(f"vmcnt({n})")
        if lg == "all":
            if self.lg: parts.append("lgkmcnt(0)")
            self.lg.clear()
        elif lg is not None:
            n = self._cnt(self.lg, lg)
            if n is not None: parts.append(f"lgkmcnt({min(n, 15)})")
        if parts: self("s_waitcnt " + " ".join(parts))
    def bg(self, n=1):
        for _ in range(n):
            if self.bgq: self.bgq.pop(0)()
    def bg_all(self):
        while self.bgq: self.bgq.pop(0)()
    def text(self):
        lines, added = pad_hazards(self.lines)
        self.nops_added = added
        return "\n".join(("" if l.endswith(":") else "    ") + l for l in lines) + "\n"
```

```python
import sys, struct
from kern import K
from asmlib import wrap, NAME
HDR = open("cdna_kernels/%s.s.ref" % NAME).read().split("; Override")[0]

EPOCH, HELLO = 0, 0x1000
FB, FC, FF, FG, FE = 0x4000, 0x6000, 0x8000, 0xA000, 0x12000
HS, ZS, KV2, KV1 = 0x20000, 0x40000, 0x80000, 0x100000
OB, HB, Z2N, GP, UB, TS = 0x400000, 0x600000, 0x800000, 0xC00000, 0x1000000, 0x2000000
WS_SIZE = 0x2100000
OOB = 0x7ff00000
X, WQKV, WPHI, WO, WIN, WSP, BSP, WOUT, OUT, WS = [f"s[{4+4*i}:{7+4*i}]" for i in range(10)]
sW, sX, sRR, sJ, sC, sG64, sG128, sM, sN, sTAG, sFAST, sLO, sHI, sONE = [f"s{i}" for i in range(44, 58)]
sT0, sT1, sT2, sT3, sW1K, sSO = [f"s{i}" for i in range(58, 64)]
SLOT = 16384
MISC = 9 * SLOT
L_STAT, L_WPHI, L_KVL = MISC, MISC + 1024, MISC + 5120
LOG2E = 1.4426950408889634
def fhex(x): return "0x%08x" % struct.unpack("<I", struct.pack("<f", x))[0]

class Regs:
    def __init__(self, lo, hi):
        self.free_ = set(range(lo, hi)); self.hw = 0
    def alloc(self, n=1, align=None):
        align = align or (1 if n == 1 else 2)
        for b in sorted(self.free_, reverse=(n >= 16)):
            if b % align == 0 and all((b + i) in self.free_ for i in range(n)):
                for i in range(n): self.free_.discard(b + i)
                self.hw = max(self.hw, b + n)
                return b
        raise RuntimeError("out of registers")
    def free(self, b, n=1):
        for i in range(n):
            assert (b + i) not in self.free_
            self.free_.add(b + i)
def vr(b, n=1): return f"v{b}" if n == 1 else f"v[{b}:{b+n-1}]"
def ar(b, n=1): return f"a{b}" if n == 1 else f"a[{b}:{b+n-1}]"

class LAddr:
    def __init__(self, k, regs): self.k, self.regs, self.base = k, regs, 0
    def off(self, absoff):
        if not (0 <= absoff - self.base < 65536):
            nb = absoff // SLOT * SLOT
            if nb > 6 * SLOT: nb = 6 * SLOT
            for r in self.regs: self.k(f"v_add_u32 v{r}, {hex((nb - self.base) & 0xffffffff)}, v{r}")
            self.base = nb
        return absoff - self.base

def gen(ts=False, force_slow=False, opt=None):
    opt = opt or {}
    k = K(); R = Regs(1, 256)
    tail = []
    stamps = []
    def stamp(name):
        if ts:
            i = len(stamps); stamps.append(name)
            k(f"s_memrealtime s[{sreg(i)}:{sreg(i)+1}]")
            if name == "hpub":
                k("s_waitcnt lgkmcnt(0)")
                for u in range(i + 1): k(f"s_mov_b32 s{88+u}, s{64+2*u}")
                nfirst.append(i + 1)
    nfirst = []
    def sreg(i): return 64 + 2 * (i - (nfirst[0] if nfirst else 0))
    def sfinal(i): return 88 + i if i < nfirst[0] else sreg(i)
    M32 = "v_mfma_f32_32x32x16_bf16"; M16 = "v_mfma_f32_16x16x32_bf16"

    def publish(stores, flag=None):
        ls, ld = k.label("slow"), k.label("back")
        k(f"s_cmp_eq_u32 {sFAST}, 1\ns_cbranch_scc0 {ls}")
        for s in stores: k.vmem(s, "pub")
        t = [f"{ls}:"] + [s + " sc1" for s in stores]
        if flag:
            k.wait(vm="all"); k.vmem(flag, "pubflag")
            t += ["s_waitcnt vmcnt(0)", flag + " sc1"]
        k(f"{ld}:")
        tail.extend(t + ["s_nop 1", f"s_branch {ld}"])
    def spin(loads, check):
        l = k.label("spin")
        k(f"s_mov_b32 {sT3}, 0\n{l}:")
        for s in loads: k(s)
        k(f"s_addk_i32 {sT3}, 1\ns_cmpk_gt_u32 {sT3}, 0x7000\ns_cbranch_scc1 L_abort")
        check()
        k(f"s_cbranch_vccnz {l}")
        k.vm.clear()
    def poll_flag(va, soff):
        t = R.alloc()
        spin([f"buffer_load_dword v{t}, v{va}, {WS}, {soff} offen sc1"],
             lambda: k(f"s_waitcnt vmcnt(0)\nv_cmp_ne_u32 vcc, {sTAG}, v{t}"))
        R.free(t)
    def dma(va, srd, soff, lds, tag):
        def f():
            k(f"s_add_u32 m0, {sW1K}, {lds}\ns_mov_b32 {sSO}, {soff}")
            k.vmem(f"buffer_load_dwordx4 v{va}, {srd}, {sSO} offen lds", tag)
        f.tag = tag
        return f
    def wchunk(va, srd, pitch, colbase, chunk, slot, tag):
        return [dma(va, srd, colbase + (chunk * 128 + 32 * a) * pitch, slot * SLOT + a * 4096, tag) for a in range(4)]
    def half_allreduce(a, b, op, mid=None):
        k(f"v_permlane32_swap_b32 v{a}, v{b}\n{op} v{a}, v{a}, v{b}")
        if mid: mid(a)
        k(f"v_mov_b32 v{b}, v{a}\nv_permlane32_swap_b32 v{a}, v{b}")
    def pk(op, d, a, b, c=None, mods=""):
        k(f"v_pk_{op}_f32 {vr(d,2)}, {vr(a,2)}, {vr(b,2)}" + (f", {vr(c,2)}" if c is not None else "") + (" " + mods if mods else ""))
    def cvt(d, s, n):
        for i in range(n): k(f"v_cvt_pk_bf16_f32 v{d+i}, v{s+2*i}, v{s+2*i+1}")
    def ln_finish(S, Q, n, baug):
        t = R.alloc()
        k(f"""v_mul_f32 v{S}, {fhex(1.0/n)}, v{S}
              v_mul_f32 v{t}, v{S}, v{S}
              v_fma_f32 v{Q}, v{Q}, {sT2}, -v{t}""")
        k(f"""v_max_f32 v{Q}, 0, v{Q}
              v_add_f32 v{Q}, {fhex(1e-5)}, v{Q}
              v_rsq_f32 v{Q}, v{Q}""")
        if baug is not None:
            k(f"""v_cvt_pk_bf16_f32 v{baug}, -v{S}, -v{S}
                  v_and_b32 v{t}, 0xffff0000, v{baug}
                  v_sub_f32 v{t}, -v{S}, v{t}
                  v_cvt_pk_bf16_f32 v{baug+1}, v{t}, 0
                  v_mov_b32 v{baug+2}, 0
                  v_mov_b32 v{baug+3}, 0""")
        R.free(t)
    def aug_a(cs0, cs1, d):
        k(f"""v_add_f32 v{cs0}, v{cs0}, v{cs1}
              v_cvt_pk_bf16_f32 v{d+1}, v{cs0}, 0
              v_lshlrev_b32 v{cs1}, 16, v{d+1}
              v_sub_f32 v{cs1}, v{cs0}, v{cs1}
              v_cvt_pk_bf16_f32 v{d}, v{cs0}, v{cs1}
              v_mov_b32 v{d+2}, 0
              v_mov_b32 v{d+3}, 0""")

    def gemm32(accs, bfrag, la, offs, sync, baug, bwait=None, bgevery=2, ahead=3):
        nt = len(accs); NB = (ahead + 1) * nt
        ring = R.alloc(4 * NB); cs = R.alloc(2 * nt)
        for i in range(2 * nt): k(f"v_mov_b32 v{cs+i}, 0")
        def rd(s):
            if s >= 32: return
            sync(s)
            for t in range(nt):
                b = ring + 4 * ((s * nt + t) % NB)
                for jh in range(2):
                    o = la.off(offs(s, jh))
                    k.ds(f"ds_read_b64_tr_b16 {vr(b+2*jh,2)}, v{la.regs[t]} offset:{o}", ("g", s, t))
        for s in range(ahead): rd(s)
        for s in range(32):
            rd(s + ahead)
            for t in range(nt):
                b = ring + 4 * ((s * nt + t) % NB)
                k.wait(lg=("g", s, t), vm=(bwait(s) if bwait and t == 0 else None))
                k(f"{M32} {vr(accs[t],16)}, {vr(b,4)}, {bfrag(s)}, {vr(accs[t],16) if s else 0}")
                for i in range(4): k(f"v_dot2c_f32_bf16 v{cs+2*t+(i&1)}, {sONE}, v{b+i}")
            if s % bgevery == 0: k.bg()
        for t in range(nt):
            aug_a(cs + 2*t, cs + 2*t + 1, ring + 4*t)
        for t in range(nt):
            k(f"{M32} {vr(accs[t],16)}, {vr(ring+4*t,4)}, {vr(baug,4)}, {vr(accs[t],16)}")
        R.free(ring, 4 * NB); R.free(cs, 2 * nt)

    def gemm16(acc, nks, bfrag, bwait, la, offs, pre, ahead=2):
        NB = (ahead + 1) * 4
        ring = R.alloc(4 * NB)
        def rd(s):
            if s >= nks: return
            for t in range(4):
                b = ring + 4 * ((s * 4 + t) % NB)
                for jh in range(2):
                    o = la.off(offs(s, jh))
                    k.ds(f"ds_read_b64_tr_b16 {vr(b+2*jh,2)}, v{la.regs[t]} offset:{o}", ("g", s, t))
        for s in range(ahead): rd(s)
        pre()
        for s in range(nks):
            for t in range(4):
                b = ring + 4 * ((s * 4 + t) % NB)
                k.wait(lg=("g", s, t), vm=(bwait(s) if t == 0 else None))
                k(f"{M16} {vr(acc+4*t,4)}, {vr(b,4)}, {bfrag(s)}, {vr(acc+4*t,4)}")
                s2 = s + ahead
                if s2 < nks:
                    b2 = ring + 4 * ((s2 * 4 + t) % NB)
                    for jh in range(2):
                        o = la.off(offs(s2, jh))
                        k.ds(f"ds_read_b64_tr_b16 {vr(b2+2*jh,2)}, v{la.regs[t]} offset:{o}", ("g", s2, t))
        R.free(ring, 4 * NB)

    if ts: k("s_memrealtime s[100:101]")
    k(f"""s_cmp_ge_u32 s2, 256
          s_cbranch_scc1 L_end
          s_load_dwordx16 s[64:79], s[0:1], 0
          s_load_dwordx8 s[80:87], s[0:1], 64
          s_getpc_b64 s[60:61]
          s_lshr_b32 {sT0}, s2, 3
          v_and_b32 v1, 15, v0
          v_lshl_add_u32 v1, {sT0}, 4, v1
          v_lshlrev_b32 v1, 7, v1
          v_min_u32 v1, L_codeend-{NAME}_kernel-64, v1""")
    k.vmem("global_load_dword v2, v1, s[60:61]", "code")
    k(f"""v_lshrrev_b32 v1, 6, v0
          v_and_b32 v0, 63, v0
          v_readfirstlane_b32 {sW}, v1
          s_and_b32 {sX}, s2, 7
          s_lshr_b32 {sRR}, s2, 6
          s_and_b32 {sJ}, {sT0}, 7
          s_and_b32 {sC}, {sT0}, 15
          s_lshl_b32 {sG64}, {sX}, 2
          s_add_u32 {sG64}, {sG64}, {sRR}
          s_lshr_b32 {sG128}, {sG64}, 1
          s_lshr_b32 {sM}, {sW}, 1
          s_and_b32 {sN}, {sW}, 1
          s_lshl_b32 {sW1K}, {sW}, 10
          s_mov_b32 {sLO}, 0x00003f80
          s_mov_b32 {sHI}, 0x3f800000
          s_mov_b32 {sONE}, 0x3f803f80""")
    R.alloc(2, 1)
    l16 = R.alloc(); k(f"v_lshlrev_b32 v{l16}, 4, v0")
    ones = R.alloc(4)
    for i in range(4): k(f"v_mov_b32 v{ones+i}, -1")
    a_kv2p = R.alloc(); a_zsp = R.alloc(); a_kv1g = R.alloc(); a_clr = R.alloc()
    t0 = R.alloc(); t1 = R.alloc()
    k(f"""s_lshl_b32 {sT0}, {sJ}, 2
          s_add_u32 {sT0}, {sT0}, {sW}
          s_mul_i32 {sT0}, {sT0}, 9216
          s_add_u32 {sT0}, {sT0}, {KV2}
          s_lshl_b32 {sT1}, {sG64}, 8
          s_add_u32 {sT1}, {sT1}, {sT0}
          v_lshl_add_u32 v{a_kv2p}, v0, 3, {sT1}
          s_lshl_b32 {sT1}, {sX}, 7
          s_lshl_b32 {sT2}, {sRR}, 4
          s_add_u32 {sT1}, {sT1}, {sT2}
          s_add_u32 {sT1}, {sT1}, {sT0}
          s_add_u32 {sT1}, {sT1}, {8192-256}
          v_lshl_add_u32 v{t0}, v0, 3, {sT1}
          v_cmp_le_u32 vcc, 32, v0
          v_cndmask_b32 v{a_kv2p}, v{a_kv2p}, v{t0}, vcc
          v_mov_b32 v{t1}, {OOB}
          v_cmp_le_u32 vcc, 34, v0
          v_cndmask_b32 v{a_kv2p}, v{a_kv2p}, v{t1}, vcc""")
    k(f"""s_lshl_b32 {sT0}, {sX}, 3
          s_add_u32 {sT0}, {sT0}, {sJ}
          s_lshl_b32 {sT0}, {sT0}, 2
          s_add_u32 {sT0}, {sT0}, {sW}
          s_lshl_b32 {sT0}, {sT0}, 2
          s_add_u32 {sT0}, {sT0}, {sRR}
          s_mul_i32 {sT0}, {sT0}, 2176
          s_add_u32 {sT0}, {sT0}, {KV1}
          v_lshl_add_u32 v{a_kv1g}, v0, 3, {sT0}
          v_cndmask_b32 v{a_kv1g}, v{a_kv1g}, v{t1}, vcc
          v_add_u32 v{a_clr}, {sT0}, v{l16}""")
    k(f"""s_lshl_b32 {sT0}, {sG128}, 2
          s_add_u32 {sT0}, {sT0}, {sW}
          s_lshl_b32 {sT0}, {sT0}, 4
          s_add_u32 {sT0}, {sT0}, {sC}
          s_lshl_b32 {sT0}, {sT0}, 8
          s_add_u32 {sT0}, {sT0}, {ZS}
          v_and_b32 v{a_zsp}, 31, v0
          v_lshlrev_b32 v{a_zsp}, 3, v{a_zsp}
          v_lshrrev_b32 v{t0}, 5, v0
          v_lshlrev_b32 v{t0}, 2, v{t0}
          v_add3_u32 v{a_zsp}, v{a_zsp}, v{t0}, {sT0}
          v_add_u32 v{t0}, 2048, v{a_clr}
          v_cmp_le_u32 vcc, 8, v0
          v_cndmask_b32 v{t0}, v{t0}, v{t1}, vcc""")
    k("s_waitcnt lgkmcnt(0)")
    sizes = [2048*512*2, 512*1536*2, 32*256*2, 512*512*2, 512*1792*2, 2048*2048*2, 4096, 896*512*2, 2048*512*2, WS_SIZE]
    srcs = [64, 66, 68, 70, 74, 76, 78, 80, 82, 86]
    def mk(i): k(f"s_mov_b32 s{4+4*i}, s{srcs[i]}\ns_mov_b32 s{5+4*i}, s{srcs[i]+1}\ns_mov_b32 s{6+4*i}, {sizes[i]}\ns_mov_b32 s{7+4*i}, 0x20000")
    mk(9); mk(0)
    k(f"s_load_dword {sTAG}, s[86:87], {EPOCH}")
    k.vmem(f"buffer_store_dwordx4 {vr(ones,4)}, v{a_clr}, {WS}, 0 offen sc1", "clr")
    k.vmem(f"buffer_store_dwordx4 {vr(ones,4)}, v{a_clr}, {WS}, 0 offen offset:1024 sc1", "clr")
    k.vmem(f"buffer_store_dwordx4 {vr(ones,4)}, v{t0}, {WS}, 0 offen sc1", "clr")
    k.vmem(f"buffer_store_dwordx2 {vr(ones,2)}, v{a_kv2p}, {WS}, 0 offen sc1", "clr")
    k.vmem(f"buffer_store_dword v{ones}, v{a_zsp}, {WS}, 0 offen sc1", "clr")
    k(f"""s_lshl_b32 {sT0}, {sG64}, 16
          s_lshl_b32 {sT1}, {sW}, 14
          s_add_u32 {sT0}, {sT0}, {sT1}
          s_lshl_b32 {sT2}, {sJ}, 1""")
    for t in range(16):
        k(f"""s_lshl_b32 {sT3}, {sT2}, 4
              v_xor_b32 v{t1}, {sT3}, v{l16}
              s_lshl_b32 {sT3}, {sT2}, 10
              s_add_u32 m0, {sT3}, {sT1}
              s_add_u32 {sSO}, {sT3}, {sT0}""")
        k.vmem(f"buffer_load_dwordx4 v{t1}, {X}, {sSO} offen lds", "x")
        if t < 15: k(f"s_add_u32 {sT2}, {sT2}, 1\ns_and_b32 {sT2}, {sT2}, 15")
        if t == 3:
            for i in (1, 2, 3, 4, 5, 6, 7, 8): mk(i)
            k(f"s_cmp_lt_u32 {sC}, 14\ns_cselect_b32 s22, s22, 0")
    stamp("start")
    k(f"""s_lshl_b32 {sT0}, {sJ}, 1
          s_add_u32 {sT0}, {sT0}, {sN}
          s_lshl_b32 {sT0}, {sT0}, 10
          s_add_u32 m0, {sW1K}, {L_WPHI}
          s_nop 0""")
    k.vmem(f"buffer_load_dwordx4 v{l16}, {WPHI}, {sT0} offen lds", "wphi")
    a_wq = R.alloc(); a_w1k = R.alloc(); a_win = R.alloc()
    k(f"""v_lshrrev_b32 v{t0}, 3, v0
          v_lshl_add_u32 v{t0}, {sW}, 3, v{t0}
          v_lshrrev_b32 v{t1}, 2, v0
          v_and_b32 v{t1}, 4, v{t1}
          v_and_b32 v1, 7, v0
          v_xor_b32 v{t1}, v{t1}, v1
          v_lshlrev_b32 v{t1}, 4, v{t1}
          s_lshl_b32 {sT0}, {sJ}, 7
          s_lshl_b32 {sT1}, {sC}, 7
          s_lshl_b32 {sT2}, {sN}, 5
          v_mul_u32_u24 v1, 3072, v{t0}
          v_add3_u32 v{a_wq}, v1, v{t1}, {sT0}
          v_mul_u32_u24 v1, 3584, v{t0}
          v_add3_u32 v{a_win}, v1, v{t1}, {sT1}
          v_xor_b32 v{t1}, {sT2}, v{t1}
          v_lshlrev_b32 v1, 10, v{t0}
          v_add3_u32 v{a_w1k}, v1, v{t1}, {sT0}""")
    sl_k, sl_v, sl_q, sl_o = [4,5,6,7], [8,0,1,2], [3,4,5,6], [7,8,0,1]
    sl_z2, sl_z1 = [2,3,4,5], [6,7,8,0]
    J = lambda va, srd, pitch, cb, sl, nm, cs: sum([wchunk(va, srd, pitch, cb, c, sl[c], (nm, c)) for c in cs], [])
    k.bgq += J(a_wq, WQKV, 3072, 1024, sl_k, "wk", range(4)) + J(a_wq, WQKV, 3072, 2048, sl_v, "wv", [0])
    k.bg(4)
    for i in range(4): k(f"v_mov_b32 v{ones+i}, {sONE}")
    sel = R.alloc(8)
    k(f"""v_lshrrev_b32 v{t0}, 3, v0
          v_xor_b32 v{t0}, v{t0}, v0
          v_and_b32 v{t0}, 4, v{t0}
          v_lshlrev_b32 v{t0}, 2, v{t0}
          v_bfe_u32 v{t1}, v0, 1, 1
          v_or_b32 v{t0}, v{t0}, v{t1}
          v_bfe_u32 v{t1}, v0, 3, 2
          v_lshl_or_b32 v{t0}, v{t1}, 1, v{t0}
          v_and_b32 v{t1}, 1, v0
          v_lshlrev_b32 v{t1}, 4, v{t1}
          v_lshlrev_b32 v{t1}, v{t1}, {sLO}""")
    for i in range(8):
        k(f"v_cmp_eq_u32 vcc, {i}, v{t0}\nv_cndmask_b32 v{sel+i}, 0, v{t1}, vcc")
    t_s1 = R.alloc(); t_s4 = R.alloc(2, 1); t_16 = R.alloc(4, 1); t_ph = R.alloc()
    k(f"""v_bfe_u32 v{t0}, v0, 2, 2
          v_lshlrev_b32 v{t0}, 7, v{t0}
          v_bfe_u32 v{t1}, v0, 3, 1
          v_lshl_or_b32 v{t0}, v{t1}, 6, v{t0}
          v_bfe_u32 v{t1}, v0, 4, 1
          v_lshl_or_b32 v{t0}, v{t1}, 5, v{t0}
          v_and_b32 v{t1}, 3, v0
          v_lshl_or_b32 v{t_16}, v{t1}, 3, v{t0}
          v_lshrrev_b32 v{t1}, 4, v0
          v_lshl_add_u32 v{t_16}, v{t1}, 10, v{t_16}
          v_xor_b32 v{t_16+1}, 32, v{t_16}
          v_xor_b32 v{t_16+2}, 64, v{t_16}
          v_xor_b32 v{t_16+3}, 0x60, v{t_16}
          v_and_b32 v{t1}, 1, v0
          v_lshl_or_b32 v{t0}, v{t1}, 4, v{t0}
          v_bfe_u32 v{t1}, v0, 1, 1
          v_lshl_or_b32 v{t0}, v{t1}, 3, v{t0}
          v_lshrrev_b32 v{t1}, 5, v0
          v_lshl_add_u32 v{t_s4}, v{t1}, 9, v{t0}
          v_xor_b32 v{t_s4+1}, 64, v{t_s4}
          v_lshl_add_u32 v{t_s1}, v{t1}, 10, v{t0}
          s_lshl_b32 {sT0}, {sN}, 6
          v_xor_b32 v{t_s1}, {sT0}, v{t_s1}""")
    k(f"""v_and_b32 v{t_ph}, 15, v0
          v_lshlrev_b32 v{t_ph}, 3, v{t_ph}
          v_lshl_add_u32 v{t_ph}, v{t1}, 8, v{t_ph}
          v_bfe_u32 v{t1}, v0, 4, 1
          v_lshl_add_u32 v{t_ph}, v{t1}, 9, v{t_ph}
          s_add_u32 {sT0}, {sW1K}, {L_WPHI}
          v_add_u32 v{t_ph}, {sT0}, v{t_ph}""")
    k.bg(4)
    xa = R.alloc(8, 1)
    k(f"""v_and_b32 v{t0}, 15, v0
          v_lshrrev_b32 v{t1}, 4, v0
          v_xor_b32 v1, v{t0}, v{t1}
          v_lshlrev_b32 v1, 4, v1
          v_lshl_add_u32 v1, v{t0}, 10, v1
          s_lshl_b32 {sT0}, {sW}, 14
          v_add_u32 v{xa}, {sT0}, v1
          v_xor_b32 v{xa+1}, 64, v{xa}
          v_xor_b32 v{xa+2}, 0x80, v{xa}
          v_xor_b32 v{xa+3}, 0xc0, v{xa}
          v_lshrrev_b32 v1, 5, v0
          v_lshl_add_u32 v1, {sJ}, 3, v1
          v_xor_b32 v1, v1, v{t0}
          v_lshlrev_b32 v1, 4, v1
          v_lshl_add_u32 v1, v{t0}, 10, v1
          v_and_b32 v{t1}, 1, v{t1}
          v_lshl_add_u32 v1, v{t1}, 3, v1
          v_add_u32 v{xa+4}, {sT0}, v1
          v_xor_b32 v{xa+5}, 32, v{xa+4}
          v_xor_b32 v{xa+6}, 64, v{xa+4}
          v_xor_b32 v{xa+7}, 0x60, v{xa+4}""")
    xs = R.alloc(64); xres = R.alloc(8); st = R.alloc(4)
    for i in range(4): k(f"v_mov_b32 v{st+i}, 0")
    k("s_waitcnt lgkmcnt(0)")
    k(f"s_add_u32 {sTAG}, {sTAG}, 1")
    k.wait(vm="x")
    stamp("x")
    k("s_barrier")
    hv = R.alloc(2)
    lh = k.label("nohello")
    k(f"""s_getreg_b32 {sT0}, hwreg(HW_REG_XCC_ID)
          s_and_b32 {sT0}, {sT0}, 7
          s_xor_b32 {sFAST}, {sTAG}, 0x5bd1e995
          s_andn2_b32 {sFAST}, {sFAST}, 7
          s_or_b32 {sFAST}, {sFAST}, {sT0}
          s_lshl_b32 {sT0}, {sJ}, 3
          s_add_u32 {sT0}, {sT0}, {sX}
          s_lshl_b32 {sT0}, {sT0}, 4
          s_add_u32 {sT0}, {sT0}, {sRR}
          s_lshl_b32 {sT0}, {sT0}, 3
          s_add_u32 {sT0}, {sT0}, {HELLO}
          s_cmp_eq_u32 {sW}, 0
          s_cselect_b32 {sT0}, {sT0}, {OOB}
          v_mov_b32 v{hv}, {sTAG}
          v_mov_b32 v{hv+1}, {sFAST}
          v_mov_b32 v1, {sT0}
          s_mov_b64 exec, 1""")
    k.vmem(f"buffer_store_dwordx2 {vr(hv,2)}, v1, {WS}, 0 offen sc1", "hello")
    k("s_mov_b64 exec, -1")
    for u in range(16):
        k.ds(f"ds_read_b128 {vr(xs+4*u,4)}, v{xa+(u&3)} offset:{(u>>2)*256}", ("xs", u))
    for T in range(4):
        k.ds(f"ds_read_b64 {vr(xres+2*T,2)}, v{xa+4+T}", "xres")
    k(f"""v_and_b32 v{t0}, 15, v0
          v_lshrrev_b32 v{t1}, 5, v0
          v_xor_b32 v{t0}, v{t0}, v{t1}
          v_lshlrev_b32 v{t0}, 4, v{t0}
          v_and_b32 v{t1}, 31, v0
          v_lshl_add_u32 v{t0}, v{t1}, 10, v{t0}
          s_lshl_b32 {sT0}, {sM}, 15
          v_add_u32 v{xa}, {sT0}, v{t0}""")
    for i in range(1, 8): k(f"v_xor_b32 v{xa+i}, {hex(32*i)}, v{xa}")
    for u in range(16):
        k.wait(lg=("xs", u))
        for i in range(4):
            k(f"v_dot2c_f32_bf16 v{st+(i&1)}, {sONE}, v{xs+4*u+i}\nv_dot2c_f32_bf16 v{st+2+(i&1)}, v{xs+4*u+i}, v{xs+4*u+i}")
        for s in (2*u, 2*u+1):
            k.ds(f"ds_read_b128 {ar(4*s,4)}, v{xa+(s&7)} offset:{(s>>3)*256}", "xf")
        if u % 2 == 0: k.bg()
    def quad_reduce(S, Q):
        k(f"""v_permlane32_swap_b32 v{S}, v{Q}
              v_add_f32 v{S}, v{S}, v{Q}
              v_mov_b32 v{Q}, v{S}
              v_permlane16_swap_b32 v{S}, v{Q}
              v_add_f32 v{S}, v{S}, v{Q}""")
    k(f"""v_add_f32 v{st}, v{st}, v{st+1}
          v_add_f32 v{st+2}, v{st+2}, v{st+3}""")
    quad_reduce(st, st + 2)
    k(f"""v_and_b32 v{t0}, 15, v0
          v_lshl_add_u32 v{t0}, {sW}, 4, v{t0}
          v_lshrrev_b32 v{t1}, 5, v0
          v_lshl_add_u32 v{t0}, v{t0}, 1, v{t1}
          v_lshlrev_b32 v{t0}, 2, v{t0}
          v_add_u32 v{t0}, {L_STAT}, v{t0}""")
    k.ds(f"ds_write_b32 v{t0}, v{st}", "stw")
    R.free(xs, 64); R.free(xa, 8)
    wph = R.alloc(8)
    k.wait(vm="wphi")
    for jh in range(2): k.ds(f"ds_read_b64_tr_b16 {vr(wph+2*jh,2)}, v{t_ph} offset:{jh*128}", "wph")
    k(f"""v_and_b32 v{t0}, 31, v0
          v_lshl_add_u32 v{t0}, {sM}, 5, v{t0}
          v_lshlrev_b32 v{t0}, 3, v{t0}
          v_add_u32 v{t0}, {L_STAT}, v{t0}
          v_and_b32 v{t1}, 16, v0
          v_cmp_ne_u32 vcc, 0, v{t1}""")
    k.wait(lg="all", vm=("wk", 0))
    k("s_barrier")
    R.free(t_ph)
    k.bgq += J(a_wq, WQKV, 3072, 2048, sl_v, "wv", [1, 2, 3]) + J(a_wq, WQKV, 3072, 0, sl_q, "wq", [0])
    k.ds(f"ds_read_b64 {vr(st,2)}, v{t0}", "st")
    for i in range(4):
        k(f"v_cndmask_b32 v{wph+4+i}, 0, v{wph+i}, vcc\nv_cndmask_b32 v{wph+i}, v{wph+i}, 0, vcc")
    baug = R.alloc(4)
    k(f"s_mov_b32 {sT2}, {fhex(1.0/512)}")
    k.wait(lg="st")
    ln_finish(st, st + 1, 512, baug)
    rstd = st + 1; sc = st + 2
    k(f"v_mul_f32 v{sc}, {fhex(LOG2E)}, v{rstd}")
    k(f"v_mov_b32 v{st}, v{rstd}")
    la1 = LAddr(k, [t_s1])
    def offs1(sl): return lambda s, jh: sl[s >> 3] * SLOT + (s & 7) * 2048 + jh * 512
    def chunk_sync(nm, first=True):
        def f(s):
            if s % 8 == 0 and (s or first):
                k.wait(vm=(nm, s >> 3)); k("s_barrier")
        return f
    def whole_sync(nm):
        def f(s):
            if s == 0:
                k.wait(vm=(nm, 3)); k("s_barrier")
        return f
    xf = lambda s: ar(4 * s, 4)
    acc = R.alloc(16)

    def phi(acc, ph):
        kb = R.alloc(8); P = R.alloc(16); E = R.alloc(32); mm = R.alloc(8)
        cvt(kb, acc, 8)
        k(f"{M32} {vr(P,16)}, {vr(wph,4)}, {vr(kb,4)}, 0")
        k(f"{M32} {vr(P,16)}, {vr(wph+4,4)}, {vr(kb+4,4)}, {vr(P,16)}")
        k.bg(2)
        for o, (op3, op2) in enumerate((("v_max3_f32", "v_max_f32"), ("v_min3_f32", "v_min_f32"))):
            for e in range(2):
                p = P + 8*e; d = mm + 2*o + e; t = mm + 4 + e
                k(f"""{op3} v{d}, v{p}, v{p+1}, v{p+2}
                      {op3} v{t}, v{p+3}, v{p+4}, v{p+5}
                      {op3} v{d}, v{p+6}, v{p+7}, v{d}
                      {op2} v{d}, v{d}, v{t}""")
        half_allreduce(mm, mm + 1, "v_max_f32")
        half_allreduce(mm + 2, mm + 3, "v_min_f32")
        pk("mul", mm, mm, sc, mods="op_sel_hi:[1,0]")
        pk("mul", mm + 2, mm + 2, sc, mods="op_sel_hi:[1,0]")
        k.bg()
        for e in range(2):
            for i in range(0, 8, 2):
                pk("fma", E + 16*e + i, P + 8*e + i, sc, mm, f"op_sel:[0,0,{e}] op_sel_hi:[1,0,{e}] neg_lo:[0,0,1] neg_hi:[0,0,1]")
                pk("fma", E + 16*e + 8 + i, P + 8*e + i, sc, mm + 2, f"op_sel:[0,0,{e}] op_sel_hi:[1,0,{e}] neg_lo:[1,0,0] neg_hi:[1,0,0]")
        for i in range(32):
            k(f"v_exp_f32 v{E+i}, v{E+i}")
            if i % 8 == 0: k.bg()
        for q in range(4):
            b = E + 8*q
            pk("add", P, b, b + 2); pk("add", P + 2, b + 4, b + 6); pk("add", P, P, P + 2)
            k(f"v_add_f32 v{mm+q}, v{P}, v{P+1}")
        k.bg()
        rc = lambda a: k(f"v_rcp_f32 v{a}, v{a}")
        half_allreduce(mm, mm + 1, "v_add_f32", rc)
        half_allreduce(mm + 2, mm + 3, "v_add_f32", rc)
        for q in range(4):
            for i in range(0, 8, 2):
                pk("mul", E + 8*q + i, E + 8*q + i, mm + (q & 2), mods=f"op_sel:[0,{q&1}] op_sel_hi:[1,{q&1}]")
            cvt(ph + 4*q, E + 8*q, 4)
            k.bg()
        R.free(kb, 8); R.free(P, 16); R.free(E, 32); R.free(mm, 8)

    gemm32([acc], xf, la1, offs1(sl_k), chunk_sync("wk", False), baug)
    stamp("kgemm")
    k("s_barrier")
    k.bgq += J(a_wq, WQKV, 3072, 0, sl_q, "wq", [1, 2, 3]) + J(a_w1k, WO, 1024, 0, sl_o, "wo", [0])
    a_hl = R.alloc()
    k(f"""v_bfe_u32 v{t0}, v0, 2, 3
          v_lshlrev_b32 v{t1}, 3, v{t0}
          v_add_u32 v{t1}, {sX}, v{t1}
          v_lshl_add_u32 v{t0}, {sJ}, 3, v{t0}
          v_cmp_le_u32 vcc, 32, v0
          v_cndmask_b32 v{t0}, v{t1}, v{t0}, vcc
          v_and_b32 v{t1}, 3, v0
          v_lshl_add_u32 v{t0}, v{t0}, 4, v{t1}
          v_lshlrev_b32 v{t0}, 3, v{t0}
          v_add_u32 v{a_hl}, {HELLO}, v{t0}""")
    ph = R.alloc(16)
    phi(acc, ph)
    pt = R.alloc(16); T0 = R.alloc(16); T1 = R.alloc(16)
    for e, T in enumerate((T0, T1)):
        k(f"{M32} {vr(T,16)}, {vr(ph+8*e,4)}, {vr(sel,4)}, 0")
        k(f"{M32} {vr(T,16)}, {vr(ph+8*e+4,4)}, {vr(sel+4,4)}, {vr(T,16)}")
    k.vmem(f"buffer_load_dwordx2 {vr(hv,2)}, v{a_hl}, {WS}, 0 offen sc1", "hl")
    k(f"v_sub_u32 v{a_clr}, v{a_clr}, v{l16}\nv_min_u32 v{t0}, 16, v0\nv_lshl_add_u32 v{a_clr}, v{t0}, 7, v{a_clr}")
    k.vmem(f"buffer_load_dword v2, v{a_clr}, {WS}, 0 offen sc1", "touch")
    cvt(pt, T0, 8); cvt(pt + 8, T1, 8)
    for T in (T0, T1): k(f"{M32} {vr(T,16)}, {vr(ones,4)}, {vr(sel+4,4)}, 0")
    stamp("phik")
    gemm32([acc], xf, la1, offs1(sl_v), whole_sync("wv"), baug, bgevery=4)
    vb = R.alloc(16)
    for i in range(0, 16, 2): pk("mul", acc + i, acc + i, st)
    cvt(vb, acc, 8)
    for e, T in enumerate((T0, T1)):
        k(f"{M32} {vr(T,16)}, {vr(vb+4*e,4)}, {vr(sel,4)}, {vr(T,16)}")
    def hello_chk():
        k(f"""v_xor_b32 v{hv+1}, {sFAST}, v{hv+1}
              v_lshrrev_b32 v{t0}, 3, v{hv+1}
              v_xor_b32 v{hv}, {sTAG}, v{hv}
              v_or_b32 v{t0}, v{t0}, v{hv}
              v_cmp_ne_u32 vcc, 0, v{t0}""")
    lok = k.label("hello_ok")
    k.wait(vm="hl"); hello_chk(); k(f"s_cbranch_vccz {lok}")
    keep = list(k.vm)
    spin([f"buffer_load_dwordx2 {vr(hv,2)}, v{a_hl}, {WS}, 0 offen sc1"], lambda: (k("s_waitcnt vmcnt(0)"), hello_chk()))
    k.vm = keep
    k(f"""{lok}:
          v_cmp_ne_u32 vcc, 0, v{hv+1}
          s_nop 1
          s_cmp_eq_u32 vcc_lo, 0
          s_cselect_b32 {sFAST}, {0 if force_slow else 1}, 0""")
    R.free(a_hl); R.free(hv, 2)
    a_p = R.alloc()
    k(f"""s_lshl_b32 {sT0}, {sX}, 3
          s_add_u32 {sT0}, {sT0}, {sJ}
          s_lshl_b32 {sT0}, {sT0}, 1
          s_add_u32 {sT0}, {sT0}, {sN}
          s_mul_i32 {sT0}, {sT0}, {2*8704}
          s_lshl_b32 {sT1}, {sRR}, 1
          s_add_u32 {sT1}, {sT1}, {sM}
          s_mul_i32 {sT1}, {sT1}, 272
          s_add_u32 {sT0}, {sT0}, {sT1}
          s_add_u32 {sT0}, {sT0}, {KV1}
          v_lshrrev_b32 v{t0}, 5, v0
          v_mul_u32_u24 v{t0}, 2176, v{t0}
          v_and_b32 v{t1}, 31, v0
          v_cmp_lt_u32 vcc, 16, v{t1}
          v_lshlrev_b32 v{t1}, 4, v{t1}
          v_add3_u32 v{a_p}, v{t0}, v{t1}, {sT0}
          v_mov_b32 v{t1}, {OOB}
          v_cndmask_b32 v{a_p}, v{a_p}, v{t1}, vcc
          s_movk_i32 {sT0}, 4352
          s_movk_i32 {sT1}, 8704
          s_movk_i32 {sT2}, {8704+4352}""")
    cvt(vb, T0, 8); cvt(vb + 8, T1, 8)
    for ks in range(2):
        for e, T in enumerate((T0, T1)):
            k(f"{M32} {vr(T,16)}, {vr(pt+8*e+4*ks,4)}, {vr(vb+8*e+4*ks,4)}, {vr(T,16) if ks else 0}")
    cvt(pt, T0, 8); cvt(pt + 8, T1, 8)
    publish([f"buffer_store_dwordx4 {vr(pt+4*q,4)}, v{a_p}, {WS}, {so} offen" for q, so in enumerate(("0", sT0, sT1, sT2))])
    stamp("kvpub")
    R.free(a_p); R.free(vb, 16)
    g1 = T0
    def chk1():
        k("s_waitcnt vmcnt(0)")
        k(f"v_max3_u32 v{t0}, v{g1}, v{g1+2}, v{g1+4}\nv_max3_u32 v{t1}, v{g1+6}, v{g1+8}, v{g1+10}")
        k(f"v_max3_u32 v{t0}, v{g1+12}, v{g1+14}, v{t0}\nv_max_u32 v{t0}, v{t0}, v{t1}\nv_cmp_eq_u32 vcc, -1, v{t0}")
    for i in range(4): k(f"v_mov_b32 v{T1+i}, 0")
    spin([f"buffer_load_dwordx2 {vr(g1+2*s,2)}, v{a_kv1g}, {WS}, 0 offen offset:{272*s} sc1" for s in range(8)], chk1)
    for s in range(8):
        for i in range(4): k(f"v_dot2c_f32_bf16 v{T1+i}, {sHI if i&1 else sLO}, v{g1+2*s+(i>>1)}")
    cvt(T1 + 4, T1, 2)
    k.vmem(f"buffer_store_dwordx2 {vr(T1+4,2)}, v{a_kv2p}, {WS}, 0 offen sc1", "kv2")
    stamp("a1")
    R.free(a_kv1g); R.free(a_clr); R.free(a_kv2p); R.free(pt, 16)
    k.bg_all()
    def qsync(s):
        if s == 0:
            k.wait(vm=("wq", 3)); k("s_barrier")
            k.bgq += J(a_w1k, WO, 1024, 0, sl_o, "wo", [1, 2, 3]) + J(a_win, WIN, 3584, 1792, sl_z2, "wz2", [0])
    gemm32([acc], xf, la1, offs1(sl_q), qsync, baug)
    k.bg_all()
    phi(acc, ph)
    R.free(t_s1); R.free(a_wq); R.free(baug, 4); R.free(wph, 8); R.free(st, 4)
    stamp("phiq")
    a_op = R.alloc(); a_fbp = R.alloc(); a_fl = R.alloc(); a_hp = R.alloc(); a_hsp = R.alloc(); a_z = R.alloc(); a_kw = R.alloc(2, 1); a_kr = R.alloc()
    k(f"""s_lshl_b32 {sT0}, {sG64}, 1
          s_add_u32 {sT0}, {sT0}, {sM}
          s_lshl_b32 {sT1}, {sJ}, 1
          s_add_u32 {sT1}, {sT1}, {sN}
          s_lshl_b32 {sT2}, {sT0}, 5
          s_add_u32 {sT2}, {sT2}, {sT1}
          s_lshl_b32 {sT3}, {sT2}, 10
          s_add_u32 {sT3}, {sT3}, {OB}
          v_bfe_u32 v{t0}, v0, 4, 1
          v_lshlrev_b32 v{t0}, 14, v{t0}
          v_lshrrev_b32 v{t1}, 5, v0
          v_lshl_or_b32 v{t0}, v{t1}, 8, v{t0}
          v_and_b32 v1, 15, v0
          v_lshlrev_b32 v{t1}, 4, v1
          v_add3_u32 v{a_op}, v{t0}, v{t1}, {sT3}
          s_lshl_b32 {sT2}, {sT2}, 2
          v_mov_b32 v{a_fbp}, {sT2}
          s_lshl_b32 {sT0}, {sT0}, 7
          v_lshl_add_u32 v{a_fl}, v1, 2, {sT0}""")
    k(f"""s_lshl_b32 {sT1}, {sT0}, 8
          s_lshl_b32 {sT2}, {sJ}, 12
          s_add_u32 {sT1}, {sT1}, {sT2}
          s_lshl_b32 {sT2}, {sN}, 8
          s_add_u32 {sT1}, {sT1}, {sT2}
          s_add_u32 {sT1}, {sT1}, {HB}
          v_lshrrev_b32 v{t0}, 4, v0
          v_lshlrev_b32 v{t0}, 9, v{t0}
          v_add3_u32 v{a_hp}, v{t0}, v{t1}, {sT1}""")
    k(f"""s_lshl_b32 {sT1}, {sT0}, 4
          s_lshl_b32 {sT2}, {sJ}, 8
          s_add_u32 {sT1}, {sT1}, {sT2}
          s_lshl_b32 {sT2}, {sN}, 7
          s_add_u32 {sT1}, {sT1}, {sT2}
          s_add_u32 {sT1}, {sT1}, {HS}
          v_lshrrev_b32 v{t0}, 5, v0
          v_lshl_add_u32 v{t0}, v1, 1, v{t0}
          v_lshl_add_u32 v{a_hsp}, v{t0}, 2, {sT1}
          v_and_b32 v{t0}, 16, v0
          v_cmp_ne_u32 vcc, 0, v{t0}
          v_mov_b32 v{t0}, {OOB}
          v_cndmask_b32 v{a_hsp}, v{a_hsp}, v{t0}, vcc""")
    k(f"""v_lshrrev_b32 v{t0}, 4, v0
          v_lshlrev_b32 v{a_z}, 7, v{t0}
          v_lshl_add_u32 v{a_z}, v1, 2, v{a_z}
          s_mul_i32 {sT1}, {sW}, 1088
          s_add_u32 {sT1}, {sT1}, {L_KVL}
          v_mul_u32_u24 v{t0}, 272, v{t0}
          v_add3_u32 v{a_kw}, v{t0}, v{t1}, {sT1}
          v_bfe_u32 v{t0}, v0, 2, 2
          v_mul_u32_u24 v{t0}, 272, v{t0}
          v_and_b32 v{t1}, 3, v0
          v_lshl_add_u32 v{t0}, v{t1}, 2, v{t0}
          v_lshrrev_b32 v{t1}, 5, v0
          v_lshlrev_b32 v1, 1, v{t1}
          v_add3_u32 v{a_kw+1}, v{t0}, v1, {sT1}
          v_mul_u32_u24 v{t1}, 272, v{t1}
          v_and_b32 v{t0}, 31, v0
          v_min_u32 v{t0}, 16, v{t0}
          v_lshlrev_b32 v{t0}, 4, v{t0}
          s_mul_i32 {sT1}, {sN}, 2176
          s_add_u32 {sT1}, {sT1}, {L_KVL}
          v_add3_u32 v{a_kr}, v{t0}, v{t1}, {sT1}
          s_lshl_b32 {sT0}, {sJ}, 2
          s_add_u32 {sT0}, {sT0}, {sW}
          s_mul_i32 {sT0}, {sT0}, 9216
          s_add_u32 {sT0}, {sT0}, {KV2}
          s_add_u32 {sT1}, {sT0}, 4096
          s_add_u32 {sT2}, {sT0}, 8192""")
    for o in (0, 512): k.vmem(f"buffer_load_dword v2, v{a_op}, {WS}, 0 offen offset:{o} sc1", "touch")
    for o in (0, 2048): k.vmem(f"buffer_load_dword v2, v{a_hp}, {WS}, 0 offen offset:{o} sc1", "touch")
    k.vmem(f"buffer_load_dword v2, v{a_hsp}, {WS}, 0 offen sc1", "touch")
    k.vmem(f"buffer_load_dword v2, v{a_zsp}, {WS}, 0 offen sc1", "touch")
    k(f"v_lshrrev_b32 v{t0}, 4, v0\nv_min_u32 v{t0}, 2, v{t0}\nv_lshl_add_u32 v{t0}, v{t0}, 13, v{a_fl}\ns_movk_i32 {sSO}, {FB}")
    k.vmem(f"buffer_load_dword v2, v{t0}, {WS}, {sSO} offen sc1", "touch")
    g2 = R.alloc(32); gz = R.alloc(4); sm = R.alloc(10)
    def chk2():
        for xx in range(8):
            k(f"s_waitcnt vmcnt({9-xx})")
            k(f"v_max3_u32 v{t0}, v{g2+4*xx}, v{g2+4*xx+2}, v{t0}" if xx else f"v_max_u32 v{t0}, v{g2}, v{g2+2}")
        k(f"s_waitcnt vmcnt(0)\nv_max3_u32 v{t0}, v{gz}, v{gz+1}, v{t0}\nv_cmp_eq_u32 vcc, -1, v{t0}")
    for i in range(10): k(f"v_mov_b32 v{sm+i}, 0")
    spin([f"buffer_load_dwordx4 {vr(g2+4*xx,4)}, v{l16}, {WS}, {sT1 if xx>>2 else sT0} offen offset:{1024*(xx&3)} sc1" for xx in range(8)]
         + [f"buffer_load_dword v{gz+u}, v{a_z}, {WS}, {sT2} offen offset:{512*u} sc1" for u in range(2)], chk2)
    stamp("a2")
    for u in range(2):
        k(f"v_dot2c_f32_bf16 v{sm+8}, {sLO}, v{gz+u}\nv_dot2c_f32_bf16 v{sm+9}, {sHI}, v{gz+u}")
    for xx in range(8):
        for i in range(8): k(f"v_dot2c_f32_bf16 v{sm+i}, {sHI if i&1 else sLO}, v{g2+4*xx+(i>>1)}")
    quad_reduce(sm + 8, sm + 9)
    cvt(gz, sm, 4)
    k.ds(f"ds_write_b128 v{a_kw}, {vr(gz,4)}", "kw")
    k(f"v_cvt_pk_bf16_f32 v{sm+8}, v{sm+8}, v{sm+8}")
    k.ds(f"ds_write_b16 v{a_kw+1}, v{sm+8} offset:256", "kw")
    k.wait(lg="all"); k("s_barrier")
    for q in range(4):
        k.ds(f"ds_read_b128 {vr(g2+4*q,4)}, v{a_kr} offset:{(q>>1)*1088+(q&1)*544}", ("kr", q))
    for e, T in enumerate((T0, T1)):
        k.wait(lg=("kr", 2*e)); k(f"{M32} {vr(T,16)}, {vr(g2+8*e,4)}, {vr(ph+8*e,4)}, 0")
        k.wait(lg=("kr", 2*e+1)); k(f"{M32} {vr(T,16)}, {vr(g2+8*e+4,4)}, {vr(ph+8*e+4,4)}, {vr(T,16)}")
    tagv = R.alloc(); k(f"v_mov_b32 v{tagv}, {sTAG}")
    for i in range(8):
        k(f"v_lshlrev_b32 v{acc+2*i}, 16, v{xres+i}\nv_and_b32 v{acc+2*i+1}, 0xffff0000, v{xres+i}")
    for T in (T0, T1): k(f"v_add_f32 v{T+8}, {fhex(1e-6)}, v{T+8}")
    for T in (T0, T1): k(f"v_rcp_f32 v{T+8}, v{T+8}")
    for e, T in enumerate((T0, T1)):
        for i in range(0, 8, 2): pk("mul", T + i, T + i, T + 8, mods="op_sel_hi:[1,0]")
        cvt(g2 + 4*e, T, 4)
    k(f"s_movk_i32 {sT0}, {FB}")
    publish([f"buffer_store_dwordx4 {vr(g2+4*e,4)}, v{a_op}, {WS}, 0 offen offset:{512*e}" for e in range(2)],
            f"buffer_store_dword v{tagv}, v{a_fbp}, {WS}, {sT0} offen")
    stamp("opub")
    R.free(g2, 32); R.free(gz, 4); R.free(sm, 10); R.free(T0, 16); R.free(T1, 16); R.free(ph, 16)
    R.free(a_op); R.free(a_z); R.free(a_kw, 2); R.free(a_kr)
    k("s_barrier")
    of = R.alloc(64)
    la16 = LAddr(k, [t_16 + i for i in range(4)])
    def pre3():
        poll_flag(a_fl, sT0)
        stamp("b")
        k(f"""s_lshl_b32 {sT0}, {sG64}, 2
              s_add_u32 {sT0}, {sT0}, {sW}
              s_lshl_b32 {sT0}, {sT0}, 14
              s_add_u32 {sT0}, {sT0}, {OB}""")
        for s in range(16):
            if s and s % 4 == 0: k(f"s_add_u32 {sT0}, {sT0}, 4096")
            k.vmem(f"buffer_load_dwordx4 {vr(of+4*s,4)}, v{l16}, {WS}, {sT0} offen offset:{1024*(s&3)} sc1", ("o", s))
        k.bgq += J(a_win, WIN, 3584, 1792, sl_z2, "wz2", [1, 2, 3]) + J(a_win, WIN, 3584, 0, sl_z1, "wz1", [0])
        k.bg(opt.get("bg3", 0))
    gemm16(acc, 16, lambda s: vr(of+4*s, 4), lambda s: ("o", s), la16,
           lambda s, jh: sl_o[s >> 2] * SLOT + (s & 3) * 4096 + jh * 512, pre3)
    R.free(of, 64)
    hk = xres
    cvt(hk, acc, 8)
    st = R.alloc(4)
    for i in range(4): k(f"v_mov_b32 v{st+i}, 0")
    for i in range(8):
        k(f"v_dot2c_f32_bf16 v{st+(i&1)}, {sONE}, v{hk+i}\nv_dot2c_f32_bf16 v{st+2+(i&1)}, v{hk+i}, v{hk+i}")
    k(f"v_add_f32 v{st}, v{st}, v{st+1}\nv_add_f32 v{st+2}, v{st+2}, v{st+3}")
    quad_reduce(st, st + 2)
    k(f"s_movk_i32 {sT0}, {FC}")
    publish([f"buffer_store_dwordx4 {vr(hk+4*p,4)}, v{a_hp}, {WS}, 0 offen offset:{2048*p}" for p in range(2)]
            + [f"buffer_store_dword v{st}, v{a_hsp}, {WS}, 0 offen"],
            f"buffer_store_dword v{tagv}, v{a_fbp}, {WS}, {sT0} offen")
    stamp("hpub")
    R.free(a_hp); R.free(a_hsp); R.free(a_fbp); R.free(acc, 16)
    k(f"""s_or_b32 {sT1}, s2, {sW}
          s_cmp_eq_u32 {sT1}, 0
          s_cselect_b32 {sT1}, {EPOCH}, {OOB}
          v_mov_b32 v1, {sT1}""")
    k.vmem(f"buffer_store_dword v{tagv}, v1, {WS}, 0 offen", "epoch")
    k(f"s_cmp_ge_u32 {sC}, 14\ns_cbranch_scc1 L_spare")
    saved_free = set(R.free_); la16_base = la16.base
    k.bg_all()
    a_sig = R.alloc(); a_h = R.alloc(); a_f4 = R.alloc(); a_u = R.alloc(); bsp = R.alloc()
    k(f"""v_and_b32 v{t0}, 19, v0
          v_bfe_u32 v{t1}, v0, 2, 1
          v_lshl_or_b32 v{t0}, v{t1}, 3, v{t0}
          v_bfe_u32 v{t1}, v0, 3, 1
          v_lshl_or_b32 v{a_sig}, v{t1}, 2, v{t0}
          v_and_b32 v{t1}, 32, v0
          v_or_b32 v{t0}, v{a_sig}, v{t1}
          v_lshlrev_b32 v{a_h}, 4, v{t0}
          s_lshl_b32 {sT1}, {sG128}, 2
          s_add_u32 {sT1}, {sT1}, {sW}
          s_lshl_b32 {sT2}, {sT1}, 7
          v_and_b32 v1, 15, v0
          v_lshl_add_u32 v{a_f4}, v1, 2, {sT2}
          s_lshl_b32 {sT2}, {sT1}, 6
          v_lshlrev_b32 v{t0}, 1, v{a_sig}""")
    k.vmem(f"buffer_load_ushort v{bsp}, v{t0}, {BSP}, {sT2} offen", "bsp")
    k(f"""s_mul_i32 {sT2}, {sT1}, {2*28*1024}
          s_lshl_b32 {sT3}, {sC}, 11
          s_add_u32 {sT2}, {sT2}, {sT3}
          s_add_u32 {sT2}, {sT2}, {UB}
          v_lshrrev_b32 v{t0}, 4, v{a_sig}
          v_mul_u32_u24 v{t0}, {28*1024}, v{t0}
          v_lshl_add_u32 v{t0}, v{t1}, 3, v{t0}
          v_and_b32 v1, 15, v{a_sig}
          v_lshlrev_b32 v1, 4, v1
          v_add3_u32 v{a_u}, v{t0}, v1, {sT2}
          v_lshlrev_b32 v{t0}, 3, v{a_sig}
          v_lshl_add_u32 v{a_sig}, v{t1}, 5, v{t0}""")
    hf = R.alloc(128); z2 = R.alloc(32); baug = R.alloc(4); hs = R.alloc(8)
    k.wait(vm="all"); k("s_barrier")
    k.bgq += J(a_win, WIN, 3584, 0, sl_z1, "wz1", [1, 2, 3])
    poll_flag(a_f4, sT0)
    stamp("c")
    k(f"""s_lshl_b32 {sT2}, {sT1}, 11
          s_add_u32 {sT2}, {sT2}, {HS}
          s_lshl_b32 {sT0}, {sT1}, 15
          s_add_u32 {sT0}, {sT0}, {HB}""")
    for u in range(4): k.vmem(f"buffer_load_dwordx2 {vr(hs+2*u,2)}, v{a_sig}, {WS}, {sT2} offen offset:{256*u} sc1", "hs")
    def hload(s):
        def f():
            if s and s % 4 == 0: k(f"s_add_u32 {sT0}, {sT0}, 4096")
            k.vmem(f"buffer_load_dwordx4 {vr(hf+4*s,4)}, v{a_h}, {WS}, {sT0} offen offset:{1024*(s&3)} sc1", ("h", s))
        f.tag = ("h", s)
        return f
    k.bgq = [hload(s) for s in range(32)] + k.bgq
    k.bg(10)
    k.wait(vm="hs")
    pk("add", hs, hs, hs + 2); pk("add", hs + 4, hs + 4, hs + 6); pk("add", st, hs, hs + 4)
    half_allreduce(st, st + 1, "v_add_f32")
    k(f"s_mov_b32 {sT2}, {fhex(1.0/512)}")
    ln_finish(st, st + 1, 512, baug)
    k(f"v_mov_b32 v{st}, v{st+1}")
    R.free(hs, 8)
    la4 = LAddr(k, [t_s4, t_s4 + 1])
    def offs4(sl): return lambda s, jh: sl[s >> 3] * SLOT + ((s >> 1) & 3) * 4096 + jh * 2048 + (s & 1) * 1024
    gemm32([z2, z2 + 16], lambda s: vr(hf+4*s, 4), la4, offs4(sl_z2), lambda s: None, baug, bwait=lambda s: ("h", s), bgevery=1, ahead=1)
    stamp("z2gemm")
    gc = R.alloc(2)
    C1 = -2 * 0.7978845608028654 * LOG2E
    k(f"v_mov_b32 v{gc}, {fhex(C1)}\nv_mov_b32 v{gc+1}, {fhex(C1*0.044715)}")
    def gelu(z):
        t = R.alloc(8)
        for b in range(0, 32, 8):
            for i in range(0, 8, 2): pk("mul", z+b+i, z+b+i, st)
            for i in range(0, 8, 2): pk("mul", t+i, z+b+i, z+b+i)
            for i in range(0, 8, 2): pk("fma", t+i, t+i, gc, gc, "op_sel:[0,1,0] op_sel_hi:[1,1,0]")
            for i in range(0, 8, 2): pk("mul", t+i, t+i, z+b+i)
            k.bg()
            for i in range(8): k(f"v_exp_f32 v{t+i}, v{t+i}")
            for i in range(0, 8, 2): k(f"v_pk_add_f32 {vr(t+i,2)}, {vr(t+i,2)}, 1.0 op_sel_hi:[1,0]")
            for i in range(8): k(f"v_rcp_f32 v{t+i}, v{t+i}")
            k.bg()
            for i in range(0, 8, 2): pk("mul", z+b+i, z+b+i, t+i)
        R.free(t, 8)
    gelu(z2)
    zs = R.alloc(14)
    pk("add", zs, z2, z2 + 2); pk("mul", zs + 2, z2, z2); pk("fma", zs + 2, z2 + 2, z2 + 2, zs + 2)
    for i in range(4, 32, 2):
        pk("add", zs, zs, z2 + i); pk("fma", zs + 2, z2 + i, z2 + i, zs + 2)
    k(f"""v_add_f32 v{zs}, v{zs}, v{zs+1}
          v_add_f32 v{zs+2}, v{zs+2}, v{zs+3}
          v_permlane32_swap_b32 v{zs}, v{zs+2}
          v_add_f32 v{t1}, v{zs}, v{zs+2}""")
    publish([f"buffer_store_dword v{t1}, v{a_zsp}, {WS}, 0 offen"])
    stamp("zspub")
    k(f"""v_and_b32 v{t0}, 31, v0
          v_lshlrev_b32 v{t0}, 3, v{t0}
          v_lshrrev_b32 v1, 5, v0
          v_mul_u32_u24 v1, 1792, v1
          v_add_u32 v{a_zsp}, v{t0}, v1
          s_lshl_b32 {sT2}, {sT1}, 12
          s_add_u32 {sT0}, {sT2}, {ZS}""")
    def chkz():
        k("s_waitcnt vmcnt(0)")
        k(f"v_max_u32 v{t0}, v{zs}, v{zs+1}")
        for u in range(1, 7): k(f"v_max3_u32 v{t0}, v{zs+2*u}, v{zs+2*u+1}, v{t0}")
        k(f"v_cmp_eq_u32 vcc, -1, v{t0}")
    spin([f"buffer_load_dwordx2 {vr(zs+2*u,2)}, v{a_zsp}, {WS}, {sT0} offen offset:{256*u} sc1" for u in range(7)], chkz)
    stamp("d")
    pk("add", zs, zs, zs+2); pk("add", zs+4, zs+4, zs+6); pk("add", zs+8, zs+8, zs+10)
    pk("add", zs, zs, zs+12); pk("add", zs+4, zs+4, zs+8); pk("add", zs, zs, zs+4)
    half_allreduce(zs, zs + 1, "v_add_f32")
    k(f"s_mov_b32 {sT2}, {fhex(1.0/896)}")
    ln_finish(zs, zs + 1, 896, None)
    k(f"v_mul_f32 v{zs}, v{zs}, v{zs+1}")
    zb = R.alloc(16)
    for ft in range(2):
        for i in range(0, 16, 2):
            pk("fma", z2+16*ft+i, z2+16*ft+i, zs, zs, "op_sel:[0,1,0] op_sel_hi:[1,1,0] neg_lo:[0,0,1] neg_hi:[0,0,1]")
        cvt(zb + 8*ft, z2 + 16*ft, 8)
        k(f"{M32} {vr(z2+16*ft,16)}, {vr(zb+8*ft,4)}, {vr(sel,4)}, 0")
        k(f"{M32} {vr(z2+16*ft,16)}, {vr(zb+8*ft+4,4)}, {vr(sel+4,4)}, {vr(z2+16*ft,16)}")
    k(f"""s_lshl_b32 {sT0}, {sC}, 18
          s_lshl_b32 {sT2}, {sT1}, 12
          s_add_u32 {sT0}, {sT0}, {sT2}
          s_add_u32 {sT0}, {sT0}, {Z2N}""")
    for ft in range(2):
        cvt(zb + 8*ft, z2 + 16*ft, 8)
        for ks in range(2):
            k.vmem(f"buffer_store_dwordx4 {vr(zb+8*ft+4*ks,4)}, v{l16}, {WS}, {sT0} offen offset:{(2*ks+ft)*1024} sc1", "z2n")
    k(f"""s_lshr_b32 {sT0}, {sG128}, 3
          s_lshl_b32 {sT2}, {sC}, 1
          s_add_u32 {sT0}, {sT0}, {sT2}
          s_lshl_b32 {sT0}, {sT0}, 5
          s_and_b32 {sT2}, {sG128}, 7
          s_add_u32 {sT0}, {sT0}, {sT2}
          s_lshl_b32 {sT0}, {sT0}, 2
          s_add_u32 {sT0}, {sT0}, {FE}
          s_cmp_eq_u32 {sW}, 0
          s_cselect_b32 {sT0}, {sT0}, {OOB}
          v_mov_b32 v1, {sT0}""")
    k.bg_all()
    k.wait(vm="all"); k("s_barrier")
    k("s_mov_b64 exec, 1")
    k.vmem(f"buffer_store_dword v{tagv}, v1, {WS}, 0 offen sc1", "fe")
    k("s_mov_b64 exec, -1")
    stamp("z2pub")
    R.free(zb, 16); R.free(zs, 14); R.free(a_zsp); R.free(a_sig); R.free(a_h); R.free(sel, 8); R.free(ones, 4)
    a_sp = R.alloc(2, 1); r_sp = R.alloc(4, 1)
    k(f"""v_bfe_u32 v{t0}, v0, 3, 2
          v_lshrrev_b32 v{t1}, 5, v0
          v_lshl_or_b32 v{t0}, v{t1}, 3, v{t0}
          v_lshlrev_b32 v{t0}, 12, v{t0}
          v_lshrrev_b32 v1, 4, v0
          v_xor_b32 v1, v1, v0
          v_and_b32 v1, 7, v1
          v_lshl_or_b32 v{t0}, v1, 4, v{t0}
          s_lshl_b32 {sT0}, {sT1}, 17
          s_and_b32 {sT2}, {sC}, 1
          s_lshl_b32 {sT2}, {sT2}, 11
          s_add_u32 {sT0}, {sT0}, {sT2}
          v_add_u32 v{a_sp}, {sT0}, v{t0}
          v_xor_b32 v{a_sp+1}, 64, v{a_sp}
          v_bfe_u32 v{t0}, v0, 1, 3
          v_xor_b32 v{t0}, v{t0}, v{t1}
          v_lshlrev_b32 v{t0}, 4, v{t0}
          v_and_b32 v1, 31, v0
          v_lshl_or_b32 v{t0}, v1, 7, v{t0}
          s_lshl_b32 {sW1K}, {sW}, 12
          v_add_u32 v{r_sp}, {sW1K}, v{t0}
          v_xor_b32 v{r_sp+1}, 32, v{r_sp}
          v_xor_b32 v{r_sp+2}, 64, v{r_sp}
          v_xor_b32 v{r_sp+3}, 0x60, v{r_sp}""")
    lasp = LAddr(k, [r_sp + i for i in range(4)])
    sl_sp = [1, 2, 3]
    def sp_dma(b):
        return [dma(a_sp + (ii & 1), WSP, (4*(ii & 1) + 16*(ii >> 1)) * 4096 + b * 128, sl_sp[b % 3] * SLOT + ii * 1024, ("sp", b)) for ii in range(4)]
    def sp_rd(b):
        def f():
            k.wait(vm=("sp", b))
            for s in range(4):
                o = lasp.off(sl_sp[b % 3] * SLOT)
                k.ds(f"ds_read_b128 {ar(16*b+4*s,4)}, v{r_sp+s} offset:{o}", ("spr", b))
        return f
    def sp_rel(b): return lambda: k.wait(lg=("spr", b))
    for b in range(16):
        if b >= 3: k.bgq.append(sp_rel(b - 3))
        k.bgq += sp_dma(b)
        if b >= 2: k.bgq.append(sp_rd(b - 2))
    k.bgq += [sp_rd(14), sp_rd(15)]
    k(f"""s_xor_b32 {sT0}, {sC}, 1
          s_lshl_b32 {sT2}, {sG128}, 4
          s_add_u32 {sT0}, {sT0}, {sT2}
          s_lshl_b32 {sT0}, {sT0}, 14
          s_add_u32 {sT0}, {sT0}, {sW1K}
          s_add_u32 s3, {sT0}, {GP}
          v_lshlrev_b32 v{t0}, 6, v0""")
    k.vmem(f"buffer_load_dword v2, v{t0}, {WS}, s3 offen sc1", "touch")
    for o in (0, 512, 1024, 1536): k.vmem(f"buffer_load_dword v2, v{a_u}, {WS}, 0 offen offset:{o} sc1", "touch")
    a_fg = R.alloc(); a_fe = R.alloc()
    k(f"""s_add_u32 {sT0}, {sT2}, {sC}
          s_lshl_b32 {sT0}, {sT0}, 5
          s_add_u32 {sT0}, {sT0}, {sW}
          s_lshl_b32 {sT0}, {sT0}, 2
          s_add_u32 {sT0}, {sT0}, {FG}
          v_mov_b32 v{a_fg}, {sT0}
          s_and_b32 {sT0}, {sC}, 1
          s_and_b32 {sT2}, {sC}, 14
          s_lshl_b32 {sT2}, {sT2}, 1
          s_add_u32 {sT0}, {sT0}, {sT2}
          s_lshl_b32 {sT0}, {sT0}, 7
          s_add_u32 {sT0}, {sT0}, {FE}
          v_bfe_u32 v{t0}, v0, 3, 1
          v_lshlrev_b32 v{t0}, 8, v{t0}
          v_and_b32 v{t1}, 7, v0
          v_lshlrev_b32 v{t1}, 2, v{t1}
          v_add3_u32 v{a_fe}, v{t0}, v{t1}, {sT0}""")
    k.vmem(f"buffer_load_dword v2, v{a_fg}, {WS}, 0 offen sc1", "touch")
    z1 = z2
    gemm32([z1, z1 + 16], lambda s: vr(hf+4*s, 4), la4, offs4(sl_z1), lambda s: None, baug, bgevery=1, ahead=1)
    R.free(hf, 128); R.free(baug, 4)
    gelu(z1)
    stamp("z1")
    k.bg_all()
    R.free(gc, 2); R.free(st, 4); R.free(t_s4, 2); R.free(a_sp, 2); R.free(r_sp, 4); R.free(a_win)
    k.wait(lg="all", vm="all"); k("s_barrier")
    stamp("wsp")
    poll_flag(a_fe, "0")
    stamp("e")
    R.free(a_fe)
    RING = 7 * SLOT; NS = 6
    ga = R.alloc(32); fb = R.alloc(64); pw = R.alloc(32); pb = R.alloc(16); a_ring = R.alloc()
    sZ, sRG = sT0, sT2
    k(f"""s_xor_b32 {sT0}, {sC}, 1
          s_lshl_b32 {sT0}, {sT0}, 18
          s_and_b32 {sT2}, {sC}, 1
          s_lshl_b32 {sT2}, {sT2}, 17
          s_add_u32 {sT0}, {sT0}, {sT2}
          s_lshl_b32 {sRG}, {sW}, 11
          s_add_u32 {sT0}, {sT0}, {sRG}
          s_add_u32 {sZ}, {sT0}, {Z2N}
          s_lshl_b32 {sW1K}, {sW}, 10
          v_add_u32 v{a_ring}, {RING}, v{l16}""")
    def zdma(ch, part):
        if ch >= 32: return
        if part == 0:
            if ch == 16: k(f"s_sub_u32 {sZ}, {sZ}, {15*8192}\ns_xor_b32 {sZ}, {sZ}, {1<<18}")
            elif ch: k(f"s_add_u32 {sZ}, {sZ}, 8192")
            k(f"s_add_u32 m0, {sRG}, {RING + (ch % NS) * 8192}")
        k.vmem(f"buffer_load_dwordx4 v{l16}, {WS}, {sZ} offen offset:{1024*part} sc1 lds", ("z", ch))
    sl_out = [0, 1, 2, 3, 4, 5, 6]
    out_jobs = J(a_w1k, WOUT, 1024, 0, sl_out, "wout", range(7))
    for ch in range(NS): zdma(ch, 0); zdma(ch, 1)
    k.wait(vm=("z", 0)); k("s_barrier")
    for f in range(8): k.ds(f"ds_read_b128 {vr(fb+4*f,4)}, v{a_ring} offset:{f*1024}", "zr")
    k(f"v_lshlrev_b32 v{bsp}, 16, v{bsp}")
    side = []
    for ch in range(32):
        cur = fb + 32 * (ch & 1); nxt = fb + 32 * ((ch + 1) & 1)
        k.wait(vm=("z", ch + 1), lg="all"); k("s_barrier")
        if ch == 16:
            cvt(pb, ga, 16)
            publish([f"buffer_store_dwordx4 {vr(pb+4*q,4)}, v{l16}, {WS}, s3 offen offset:{1024*q}" for q in range(4)])
            k(f"v_xor_b32 v{t0}, 128, v{a_fg}")
        if ch == 18:
            k.wait(vm="pub")
            publish([f"buffer_store_dword v{tagv}, v{t0}, {WS}, 0 offen"])
        if ch == 24:
            keepvm = list(k.vm)
            poll_flag(a_fg, "0")
            k(f"s_xor_b32 s3, s3, {1<<14}")
            for q in range(4): k.vmem(f"buffer_load_dwordx4 {vr(pb+4*q,4)}, v{l16}, {WS}, s3 offen offset:{1024*q} sc1", "pl")
            side += [f"v_mov_b32 v{pw+i}, v{bsp}" for i in range(32)]
        if ch == 27:
            k.wait(vm="pl")
            side += [f"v_dot2c_f32_bf16 v{pw+i}, {sHI if i&1 else sLO}, v{pb+(i>>1)}" for i in range(32)]
            side += [f"v_mul_f32 v{pw+i}, v{pw+i}, v{z1+i}" for i in range(32)]
        for m in range(8):
            ks, ft = m >> 1, m & 1
            first = (ch % 16 == 0 and ks == 0)
            k(f"{M32} {vr(ga+16*ft,16)}, {vr(cur+4*m,4)}, {ar(16*(ch%16)+4*ks,4)}, {0 if first else vr(ga+16*ft,16)}")
            if m < 4 and ch + 1 < 32:
                for f in (2*m, 2*m+1):
                    k.ds(f"ds_read_b128 {vr(nxt+4*f,4)}, v{a_ring} offset:{((ch+1)%NS)*8192+f*1024}", "zr")
            if m == 4: zdma(ch + NS, 0)
            if m == 5: zdma(ch + NS, 1)
            if m == 6 and out_jobs and ch >= 2: out_jobs.pop(0)()
            for _ in range(2 if m < 6 else 4):
                if side: k(side.pop(0))
    assert not side and not out_jobs
    stamp("s6")
    for i in range(0, 32, 2): pk("fma", pw + i, z1 + i, ga + i, pw + i)
    cvt(pb, pw, 16)
    k(f"""s_lshl_b32 {sT0}, {sT1}, 5
          s_add_u32 {sT0}, {sT0}, {sC}
          s_lshl_b32 {sT0}, {sT0}, 2
          s_add_u32 {sT0}, {sT0}, {FF}
          v_mov_b32 v{t0}, {sT0}""")
    publish([f"buffer_store_dwordx4 {vr(pb+4*q,4)}, v{a_u}, {WS}, 0 offen offset:{512*q}" for q in range(4)],
            f"buffer_store_dword v{tagv}, v{t0}, {WS}, 0 offen")
    stamp("upub")
    k("s_branch L_s7")
    k("L_spare:")
    mainvm = list(k.vm); k.vm = []
    k("s_waitcnt vmcnt(0)\ns_barrier")
    for jb in J(a_w1k, WOUT, 1024, 0, sl_out, "wout", range(7)): jb()
    k("s_waitcnt vmcnt(0)")
    if ts:
        for i in range(stamps.index("hpub") + 1, len(stamps)): k(f"s_memrealtime s[{sreg(i)}:{sreg(i)+1}]")
    k.vm = mainvm
    k("L_s7:")
    R.free_ = saved_free; la16.base = la16_base
    k("s_barrier")
    uf = R.alloc(112); acc = R.alloc(16)
    for i in range(8):
        k(f"v_lshlrev_b32 v{acc+2*i}, 16, v{hk+i}\nv_and_b32 v{acc+2*i+1}, 0xffff0000, v{hk+i}")
    k(f"""v_and_b32 v{t0}, 15, v0
          v_min_u32 v{t0}, 13, v{t0}
          v_and_b32 v{a_fl}, 0xffffff80, v{a_fl}
          v_lshl_add_u32 v{a_fl}, v{t0}, 2, v{a_fl}
          s_mov_b32 {sT0}, {FF}""")
    def pre7():
        poll_flag(a_fl, sT0)
        stamp("f")
        k(f"""s_lshl_b32 {sT0}, {sG64}, 2
              s_add_u32 {sT0}, {sT0}, {sW}
              s_mul_i32 {sT0}, {sT0}, {28*1024}
              s_add_u32 {sT0}, {sT0}, {UB}""")
        for s in range(28):
            if s and s % 4 == 0: k(f"s_add_u32 {sT0}, {sT0}, 4096")
            k.vmem(f"buffer_load_dwordx4 {vr(uf+4*s,4)}, v{l16}, {WS}, {sT0} offen offset:{1024*(s&3)} sc1", ("u", s))
    gemm16(acc, 28, lambda s: vr(uf+4*s, 4), lambda s: ("u", s), la16,
           lambda s, jh: sl_out[s >> 2] * SLOT + (s & 3) * 4096 + jh * 512, pre7)
    k(f"""s_mul_i32 {sT0}, {sW}, 2304
          s_add_u32 {sT0}, {sT0}, {RING}
          v_and_b32 v{t0}, 15, v0
          v_mul_u32_u24 v{t0}, 144, v{t0}
          v_lshrrev_b32 v{t1}, 4, v0
          v_lshlrev_b32 v{t1}, 3, v{t1}
          v_add3_u32 v{t0}, v{t0}, v{t1}, {sT0}
          v_lshrrev_b32 v{t1}, 3, v0
          v_mul_u32_u24 v1, 144, v{t1}
          v_and_b32 v2, 7, v0
          v_lshlrev_b32 v2, 4, v2
          v_add3_u32 v1, v1, v2, {sT0}
          v_lshl_add_u32 v2, v{t1}, 10, v2
          s_lshl_b32 {sT0}, {sG64}, 2
          s_add_u32 {sT0}, {sT0}, {sW}
          s_lshl_b32 {sT0}, {sT0}, 14
          s_lshl_b32 {sT1}, {sJ}, 7
          s_add_u32 {sT0}, {sT0}, {sT1}
          s_add_u32 {sT1}, {sT0}, 8192""")
    cvt(hk, acc, 8)
    for T in range(4): k.ds(f"ds_write_b64 v{t0}, {vr(hk+2*T,2)} offset:{32*T}", "ow")
    k.wait(lg="all")
    for u in range(2): k.ds(f"ds_read_b128 {vr(acc+4*u,4)}, v1 offset:{1152*u}", ("or", u))
    for u in range(2):
        k.wait(lg=("or", u))
        k.vmem(f"buffer_store_dwordx4 {vr(acc+4*u,4)}, v2, {OUT}, {sT1 if u else sT0} offen", "out")
    if ts:
        k("s_waitcnt vmcnt(0)")
        stamp("end")
        k(f"""s_waitcnt lgkmcnt(0)
              s_lshl_b32 {sT0}, s2, 2
              s_add_u32 {sT0}, {sT0}, {sW}
              s_lshl_b32 {sT0}, {sT0}, 7
              s_add_u32 {sT0}, {sT0}, {TS}
              v_mov_b32 v1, 0
              s_mov_b64 exec, 1""")
        for i in range(len(stamps)):
            k(f"v_mov_b32 v2, s{sfinal(i)}\nbuffer_store_dword v2, v1, {WS}, {sT0} offen offset:{4*i}")
        k(f"v_mov_b32 v2, s100\nbuffer_store_dword v2, v1, {WS}, {sT0} offen offset:120")
        k(f"v_mov_b32 v2, {sFAST}\nbuffer_store_dword v2, v1, {WS}, {sT0} offen offset:124")
    k("L_abort:\nL_end:\ns_endpgm")
    for l in tail: k(l)
    k("L_codeend:")
    body = k.text()
    gen.stamps = stamps; gen.hw = R.hw; gen.nops = k.nops_added
    return wrap(body, lds=160*1024, header=HDR)

if __name__ == "__main__":
    open("k1.s", "w").write(gen())
    print("vgpr high water", gen.hw, "nops", gen.nops)
    open("k1_ts.s", "w").write(gen(ts=True))
    print(gen.stamps, len(gen.stamps))
    open("k1_slow.s", "w").write(gen(force_slow=True))
```

```python
import sys, struct
from kern import K
from asmlib import wrap, NAME
HDR = open("cdna_kernels/%s.s.ref" % NAME).read().split("; Override")[0]

EPOCH, HELLO = 0, 0x1000
FB, FC, FF, FG, FE = 0x4000, 0x6000, 0x8000, 0xA000, 0x12000
HS, ZS, KV2, KV1 = 0x20000, 0x40000, 0x80000, 0x100000
OB, HB, Z2N, GP, UB, TS = 0x400000, 0x600000, 0x800000, 0xC00000, 0x1000000, 0x2000000
WS_SIZE = 0x2100000
OOB = 0x7ff00000
X, WQKV, WPHI, WO, WIN, WSP, BSP, WOUT, OUT, WS = [f"s[{4+4*i}:{7+4*i}]" for i in range(10)]
sW, sX, sRR, sJ, sC, sG64, sG128, sM, sN, sTAG, sFAST, sLO, sHI, sONE = [f"s{i}" for i in range(44, 58)]
sT0, sT1, sT2, sT3, sW1K, sSO = [f"s{i}" for i in range(58, 64)]
SLOT = 16384
MISC = 9 * SLOT
L_STAT, L_WPHI, L_KVL = MISC, MISC + 1024, MISC + 5120
LOG2E = 1.4426950408889634
def fhex(x): return "0x%08x" % struct.unpack("<I", struct.pack("<f", x))[0]

class Regs:
    def __init__(self, lo, hi):
        self.free_ = set(range(lo, hi)); self.hw = 0
    def alloc(self, n=1, align=None):
        align = align or (1 if n == 1 else 2)
        for b in sorted(self.free_, reverse=(n >= 16)):
            if b % align == 0 and all((b + i) in self.free_ for i in range(n)):
                for i in range(n): self.free_.discard(b + i)
                self.hw = max(self.hw, b + n)
                return b
        raise RuntimeError("out of registers")
    def free(self, b, n=1):
        for i in range(n):
            assert (b + i) not in self.free_
            self.free_.add(b + i)
def vr(b, n=1): return f"v{b}" if n == 1 else f"v[{b}:{b+n-1}]"
def ar(b, n=1): return f"a{b}" if n == 1 else f"a[{b}:{b+n-1}]"

class LAddr:
    def __init__(self, k, regs): self.k, self.regs, self.base = k, regs, 0
    def off(self, absoff):
        if not (0 <= absoff - self.base < 65536):
            nb = absoff // SLOT * SLOT
            if nb > 6 * SLOT: nb = 6 * SLOT
            for r in self.regs: self.k(f"v_add_u32 v{r}, {hex((nb - self.base) & 0xffffffff)}, v{r}")
            self.base = nb
        return absoff - self.base

def gen(ts=False, force_slow=False, opt=None):
    opt = opt or {}
    k = K(); R = Regs(1, 256)
    tail = []
    stamps = []
    def stamp(name):
        if ts:
            i = len(stamps); stamps.append(name)
            k(f"s_memrealtime s[{sreg(i)}:{sreg(i)+1}]")
            if name == "hpub":
                k("s_waitcnt lgkmcnt(0)")
                for u in range(i + 1): k(f"s_mov_b32 s{88+u}, s{64+2*u}")
                nfirst.append(i + 1)
    nfirst = []
    def sreg(i): return 64 + 2 * (i - (nfirst[0] if nfirst else 0))
    def sfinal(i): return 88 + i if i < nfirst[0] else sreg(i)
    M32 = "v_mfma_f32_32x32x16_bf16"; M16 = "v_mfma_f32_16x16x32_bf16"

    def publish(stores, flag=None):
        ls, ld = k.label("slow"), k.label("back")
        k(f"s_cmp_eq_u32 {sFAST}, 1\ns_cbranch_scc0 {ls}")
        for s in stores: k.vmem(s, "pub")
        t = [f"{ls}:"] + [s + " sc1" for s in stores]
        if flag:
            k.wait(vm="all"); k.vmem(flag, "pubflag")
            t += ["s_waitcnt vmcnt(0)", flag + " sc1"]
        k(f"{ld}:")
        tail.extend(t + ["s_nop 1", f"s_branch {ld}"])
    def spin(loads, check):
        l = k.label("spin")
        k(f"s_mov_b32 {sT3}, 0\n{l}:")
        for s in loads: k(s)
        k(f"s_addk_i32 {sT3}, 1\ns_cmpk_gt_u32 {sT3}, 0x7000\ns_cbranch_scc1 L_abort")
        check()
        k(f"s_cbranch_vccnz {l}")
        k.vm.clear()
    def poll_flag(va, soff):
        t = R.alloc()
        spin([f"buffer_load_dword v{t}, v{va}, {WS}, {soff} offen sc1"],
             lambda: k(f"s_waitcnt vmcnt(0)\nv_cmp_ne_u32 vcc, {sTAG}, v{t}"))
        R.free(t)
    def dma(va, srd, soff, lds, tag):
        def f():
            k(f"s_add_u32 m0, {sW1K}, {lds}\ns_mov_b32 {sSO}, {soff}")
            k.vmem(f"buffer_load_dwordx4 v{va}, {srd}, {sSO} offen lds", tag)
        f.tag = tag
        return f
    def wchunk(va, srd, pitch, colbase, chunk, slot, tag):
        return [dma(va, srd, colbase + (chunk * 128 + 32 * a) * pitch, slot * SLOT + a * 4096, tag) for a in range(4)]
    def half_allreduce(a, b, op, mid=None):
        k(f"v_permlane32_swap_b32 v{a}, v{b}\n{op} v{a}, v{a}, v{b}")
        if mid: mid(a)
        k(f"v_mov_b32 v{b}, v{a}\nv_permlane32_swap_b32 v{a}, v{b}")
    def pk(op, d, a, b, c=None, mods=""):
        k(f"v_pk_{op}_f32 {vr(d,2)}, {vr(a,2)}, {vr(b,2)}" + (f", {vr(c,2)}" if c is not None else "") + (" " + mods if mods else ""))
    def cvt(d, s, n):
        for i in range(n): k(f"v_cvt_pk_bf16_f32 v{d+i}, v{s+2*i}, v{s+2*i+1}")
    def ln_finish(S, Q, n, baug):
        t = R.alloc()
        k(f"""v_mul_f32 v{S}, {fhex(1.0/n)}, v{S}
              v_mul_f32 v{t}, v{S}, v{S}
              v_fma_f32 v{Q}, v{Q}, {sT2}, -v{t}""")
        k(f"""v_max_f32 v{Q}, 0, v{Q}
              v_add_f32 v{Q}, {fhex(1e-5)}, v{Q}
              v_rsq_f32 v{Q}, v{Q}""")
        if baug is not None:
            k(f"""v_cvt_pk_bf16_f32 v{baug}, -v{S}, -v{S}
                  v_and_b32 v{t}, 0xffff0000, v{baug}
                  v_sub_f32 v{t}, -v{S}, v{t}
                  v_cvt_pk_bf16_f32 v{baug+1}, v{t}, 0
                  v_mov_b32 v{baug+2}, 0
                  v_mov_b32 v{baug+3}, 0""")
        R.free(t)
    def aug_a(cs0, cs1, d):
        k(f"""v_add_f32 v{cs0}, v{cs0}, v{cs1}
              v_cvt_pk_bf16_f32 v{d+1}, v{cs0}, 0
              v_lshlrev_b32 v{cs1}, 16, v{d+1}
              v_sub_f32 v{cs1}, v{cs0}, v{cs1}
              v_cvt_pk_bf16_f32 v{d}, v{cs0}, v{cs1}
              v_mov_b32 v{d+2}, 0
              v_mov_b32 v{d+3}, 0""")

    def gemm32(accs, bfrag, la, offs, sync, baug, bwait=None, bgevery=2, ahead=3):
        nt = len(accs); NB = (ahead + 1) * nt
        ring = R.alloc(4 * NB); cs = R.alloc(2 * nt)
        for i in range(2 * nt): k(f"v_mov_b32 v{cs+i}, 0")
        def rd(s):
            if s >= 32: return
            sync(s)
            for t in range(nt):
                b = ring + 4 * ((s * nt + t) % NB)
                for jh in range(2):
                    o = la.off(offs(s, jh))
                    k.ds(f"ds_read_b64_tr_b16 {vr(b+2*jh,2)}, v{la.regs[t]} offset:{o}", ("g", s, t))
        for s in range(ahead): rd(s)
        for s in range(32):
            rd(s + ahead)
            for t in range(nt):
                b = ring + 4 * ((s * nt + t) % NB)
                k.wait(lg=("g", s, t), vm=(bwait(s) if bwait and t == 0 else None))
                k(f"{M32} {vr(accs[t],16)}, {vr(b,4)}, {bfrag(s)}, {vr(accs[t],16) if s else 0}")
                for i in range(4): k(f"v_dot2c_f32_bf16 v{cs+2*t+(i&1)}, {sONE}, v{b+i}")
            if s % bgevery == 0: k.bg()
        for t in range(nt):
            aug_a(cs + 2*t, cs + 2*t + 1, ring + 4*t)
        for t in range(nt):
            k(f"{M32} {vr(accs[t],16)}, {vr(ring+4*t,4)}, {vr(baug,4)}, {vr(accs[t],16)}")
        R.free(ring, 4 * NB); R.free(cs, 2 * nt)

    def gemm16(acc, nks, bfrag, bwait, la, offs, pre, ahead=2):
        NB = (ahead + 1) * 4
        ring = R.alloc(4 * NB)
        def rd(s):
            if s >= nks: return
            for t in range(4):
                b = ring + 4 * ((s * 4 + t) % NB)
                for jh in range(2):
                    o = la.off(offs(s, jh))
                    k.ds(f"ds_read_b64_tr_b16 {vr(b+2*jh,2)}, v{la.regs[t]} offset:{o}", ("g", s, t))
        for s in range(ahead): rd(s)
        pre()
        for s in range(nks):
            for t in range(4):
                b = ring + 4 * ((s * 4 + t) % NB)
                k.wait(lg=("g", s, t), vm=(bwait(s) if t == 0 else None))
                k(f"{M16} {vr(acc+4*t,4)}, {vr(b,4)}, {bfrag(s)}, {vr(acc+4*t,4)}")
                s2 = s + ahead
                if s2 < nks:
                    b2 = ring + 4 * ((s2 * 4 + t) % NB)
                    for jh in range(2):
                        o = la.off(offs(s2, jh))
                        k.ds(f"ds_read_b64_tr_b16 {vr(b2+2*jh,2)}, v{la.regs[t]} offset:{o}", ("g", s2, t))
        R.free(ring, 4 * NB)

    if ts or opt.get("hold"): k("s_memrealtime s[100:101]")
    k(f"""s_cmp_ge_u32 s2, 256
          s_cbranch_scc1 L_end
          s_load_dwordx16 s[64:79], s[0:1], 0
          s_load_dwordx8 s[80:87], s[0:1], 64
          s_getpc_b64 s[60:61]
          s_lshr_b32 {sT0}, s2, 3
          v_and_b32 v1, 15, v0
          v_lshl_add_u32 v1, {sT0}, 4, v1
          v_lshlrev_b32 v1, 7, v1
          v_min_u32 v1, L_codeend-{NAME}_kernel-64, v1""")
    k.vmem("global_load_dword v2, v1, s[60:61]", "code")
    k(f"""v_lshrrev_b32 v1, 6, v0
          v_and_b32 v0, 63, v0
          v_readfirstlane_b32 {sW}, v1
          s_and_b32 {sX}, s2, 7
          s_lshr_b32 {sRR}, s2, 6
          s_and_b32 {sJ}, {sT0}, 7
          s_and_b32 {sC}, {sT0}, 15
          s_lshl_b32 {sG64}, {sX}, 2
          s_add_u32 {sG64}, {sG64}, {sRR}
          s_lshr_b32 {sG128}, {sG64}, 1
          s_lshr_b32 {sM}, {sW}, 1
          s_and_b32 {sN}, {sW}, 1
          s_lshl_b32 {sW1K}, {sW}, 10
          s_mov_b32 {sLO}, 0x00003f80
          s_mov_b32 {sHI}, 0x3f800000
          s_mov_b32 {sONE}, 0x3f803f80""")
    R.alloc(2, 1)
    l16 = R.alloc(); k(f"v_lshlrev_b32 v{l16}, 4, v0")
    ones = R.alloc(4)
    for i in range(4): k(f"v_mov_b32 v{ones+i}, -1")
    a_kv2p = R.alloc(); a_zsp = R.alloc(); a_kv1g = R.alloc(); a_clr = R.alloc()
    t0 = R.alloc(); t1 = R.alloc()
    k(f"""s_lshl_b32 {sT0}, {sJ}, 2
          s_add_u32 {sT0}, {sT0}, {sW}
          s_mul_i32 {sT0}, {sT0}, 9216
          s_add_u32 {sT0}, {sT0}, {KV2}
          s_lshl_b32 {sT1}, {sG64}, 8
          s_add_u32 {sT1}, {sT1}, {sT0}
          v_lshl_add_u32 v{a_kv2p}, v0, 3, {sT1}
          s_lshl_b32 {sT1}, {sX}, 7
          s_lshl_b32 {sT2}, {sRR}, 4
          s_add_u32 {sT1}, {sT1}, {sT2}
          s_add_u32 {sT1}, {sT1}, {sT0}
          s_add_u32 {sT1}, {sT1}, {8192-256}
          v_lshl_add_u32 v{t0}, v0, 3, {sT1}
          v_cmp_le_u32 vcc, 32, v0
          v_cndmask_b32 v{a_kv2p}, v{a_kv2p}, v{t0}, vcc
          v_mov_b32 v{t1}, {OOB}
          v_cmp_le_u32 vcc, 34, v0
          v_cndmask_b32 v{a_kv2p}, v{a_kv2p}, v{t1}, vcc""")
    k(f"""s_lshl_b32 {sT0}, {sX}, 3
          s_add_u32 {sT0}, {sT0}, {sJ}
          s_lshl_b32 {sT0}, {sT0}, 2
          s_add_u32 {sT0}, {sT0}, {sW}
          s_lshl_b32 {sT0}, {sT0}, 2
          s_add_u32 {sT0}, {sT0}, {sRR}
          s_mul_i32 {sT0}, {sT0}, 2176
          s_add_u32 {sT0}, {sT0}, {KV1}
          v_lshl_add_u32 v{a_kv1g}, v0, 3, {sT0}
          v_cndmask_b32 v{a_kv1g}, v{a_kv1g}, v{t1}, vcc
          v_add_u32 v{a_clr}, {sT0}, v{l16}""")
    k(f"""s_lshl_b32 {sT0}, {sG128}, 2
          s_add_u32 {sT0}, {sT0}, {sW}
          s_lshl_b32 {sT0}, {sT0}, 4
          s_add_u32 {sT0}, {sT0}, {sC}
          s_lshl_b32 {sT0}, {sT0}, 8
          s_add_u32 {sT0}, {sT0}, {ZS}
          v_and_b32 v{a_zsp}, 31, v0
          v_lshlrev_b32 v{a_zsp}, 3, v{a_zsp}
          v_lshrrev_b32 v{t0}, 5, v0
          v_lshlrev_b32 v{t0}, 2, v{t0}
          v_add3_u32 v{a_zsp}, v{a_zsp}, v{t0}, {sT0}
          v_add_u32 v{t0}, 2048, v{a_clr}
          v_cmp_le_u32 vcc, 8, v0
          v_cndmask_b32 v{t0}, v{t0}, v{t1}, vcc""")
    k("s_waitcnt lgkmcnt(0)")
    sizes = [2048*512*2, 512*1536*2, 32*256*2, 512*512*2, 512*1792*2, 2048*2048*2, 4096, 896*512*2, 2048*512*2, WS_SIZE]
    srcs = [64, 66, 68, 70, 74, 76, 78, 80, 82, 86]
    def mk(i): k(f"s_mov_b32 s{4+4*i}, s{srcs[i]}\ns_mov_b32 s{5+4*i}, s{srcs[i]+1}\ns_mov_b32 s{6+4*i}, {sizes[i]}\ns_mov_b32 s{7+4*i}, 0x20000")
    mk(9); mk(0)
    k(f"s_load_dword {sTAG}, s[86:87], {EPOCH}")
    k.vmem(f"buffer_store_dwordx4 {vr(ones,4)}, v{a_clr}, {WS}, 0 offen sc1", "clr")
    k.vmem(f"buffer_store_dwordx4 {vr(ones,4)}, v{a_clr}, {WS}, 0 offen offset:1024 sc1", "clr")
    k.vmem(f"buffer_store_dwordx4 {vr(ones,4)}, v{t0}, {WS}, 0 offen sc1", "clr")
    k.vmem(f"buffer_store_dwordx2 {vr(ones,2)}, v{a_kv2p}, {WS}, 0 offen sc1", "clr")
    k.vmem(f"buffer_store_dword v{ones}, v{a_zsp}, {WS}, 0 offen sc1", "clr")
    k(f"""s_lshl_b32 {sT0}, {sG64}, 16
          s_lshl_b32 {sT1}, {sW}, 14
          s_add_u32 {sT0}, {sT0}, {sT1}
          s_lshl_b32 {sT2}, {sJ}, 1""")
    for t in range(16):
        k(f"""s_lshl_b32 {sT3}, {sT2}, 4
              v_xor_b32 v{t1}, {sT3}, v{l16}
              s_lshl_b32 {sT3}, {sT2}, 10
              s_add_u32 m0, {sT3}, {sT1}
              s_add_u32 {sSO}, {sT3}, {sT0}""")
        k.vmem(f"buffer_load_dwordx4 v{t1}, {X}, {sSO} offen lds", "x")
        if t < 15: k(f"s_add_u32 {sT2}, {sT2}, 1\ns_and_b32 {sT2}, {sT2}, 15")
        if t == 3:
            for i in (1, 2, 3, 4, 5, 6, 7, 8): mk(i)
            k(f"s_cmp_lt_u32 {sC}, 14\ns_cselect_b32 s22, s22, 0")
    stamp("start")
    k(f"""s_lshl_b32 {sT0}, {sJ}, 1
          s_add_u32 {sT0}, {sT0}, {sN}
          s_lshl_b32 {sT0}, {sT0}, 10
          s_add_u32 m0, {sW1K}, {L_WPHI}
          s_nop 0""")
    k.vmem(f"buffer_load_dwordx4 v{l16}, {WPHI}, {sT0} offen lds", "wphi")
    a_wq = R.alloc(); a_w1k = R.alloc(); a_win = R.alloc()
    k(f"""v_lshrrev_b32 v{t0}, 3, v0
          v_lshl_add_u32 v{t0}, {sW}, 3, v{t0}
          v_lshrrev_b32 v{t1}, 2, v0
          v_and_b32 v{t1}, 4, v{t1}
          v_and_b32 v1, 7, v0
          v_xor_b32 v{t1}, v{t1}, v1
          v_lshlrev_b32 v{t1}, 4, v{t1}
          s_lshl_b32 {sT0}, {sJ}, 7
          s_lshl_b32 {sT1}, {sC}, 7
          s_lshl_b32 {sT2}, {sN}, 5
          v_mul_u32_u24 v1, 3072, v{t0}
          v_add3_u32 v{a_wq}, v1, v{t1}, {sT0}
          v_mul_u32_u24 v1, 3584, v{t0}
          v_add3_u32 v{a_win}, v1, v{t1}, {sT1}
          v_xor_b32 v{t1}, {sT2}, v{t1}
          v_lshlrev_b32 v1, 10, v{t0}
          v_add3_u32 v{a_w1k}, v1, v{t1}, {sT0}""")
    sl_k, sl_v, sl_q, sl_o = [4,5,6,7], [8,0,1,2], [3,4,5,6], [7,8,0,1]
    sl_z2, sl_z1 = [2,3,4,5], [6,7,8,0]
    J = lambda va, srd, pitch, cb, sl, nm, cs: sum([wchunk(va, srd, pitch, cb, c, sl[c], (nm, c)) for c in cs], [])
    k.bgq += J(a_wq, WQKV, 3072, 1024, sl_k, "wk", range(4)) + J(a_wq, WQKV, 3072, 2048, sl_v, "wv", [0])
    k.bg(4)
    for i in range(4): k(f"v_mov_b32 v{ones+i}, {sONE}")
    sel = R.alloc(8)
    k(f"""v_lshrrev_b32 v{t0}, 3, v0
          v_xor_b32 v{t0}, v{t0}, v0
          v_and_b32 v{t0}, 4, v{t0}
          v_lshlrev_b32 v{t0}, 2, v{t0}
          v_bfe_u32 v{t1}, v0, 1, 1
          v_or_b32 v{t0}, v{t0}, v{t1}
          v_bfe_u32 v{t1}, v0, 3, 2
          v_lshl_or_b32 v{t0}, v{t1}, 1, v{t0}
          v_and_b32 v{t1}, 1, v0
          v_lshlrev_b32 v{t1}, 4, v{t1}
          v_lshlrev_b32 v{t1}, v{t1}, {sLO}""")
    for i in range(8):
        k(f"v_cmp_eq_u32 vcc, {i}, v{t0}\nv_cndmask_b32 v{sel+i}, 0, v{t1}, vcc")
    t_s1 = R.alloc(); t_s4 = R.alloc(2, 1); t_16 = R.alloc(4, 1); t_ph = R.alloc()
    k(f"""v_bfe_u32 v{t0}, v0, 2, 2
          v_lshlrev_b32 v{t0}, 7, v{t0}
          v_bfe_u32 v{t1}, v0, 3, 1
          v_lshl_or_b32 v{t0}, v{t1}, 6, v{t0}
          v_bfe_u32 v{t1}, v0, 4, 1
          v_lshl_or_b32 v{t0}, v{t1}, 5, v{t0}
          v_and_b32 v{t1}, 3, v0
          v_lshl_or_b32 v{t_16}, v{t1}, 3, v{t0}
          v_lshrrev_b32 v{t1}, 4, v0
          v_lshl_add_u32 v{t_16}, v{t1}, 10, v{t_16}
          v_xor_b32 v{t_16+1}, 32, v{t_16}
          v_xor_b32 v{t_16+2}, 64, v{t_16}
          v_xor_b32 v{t_16+3}, 0x60, v{t_16}
          v_and_b32 v{t1}, 1, v0
          v_lshl_or_b32 v{t0}, v{t1}, 4, v{t0}
          v_bfe_u32 v{t1}, v0, 1, 1
          v_lshl_or_b32 v{t0}, v{t1}, 3, v{t0}
          v_lshrrev_b32 v{t1}, 5, v0
          v_lshl_add_u32 v{t_s4}, v{t1}, 9, v{t0}
          v_xor_b32 v{t_s4+1}, 64, v{t_s4}
          v_lshl_add_u32 v{t_s1}, v{t1}, 10, v{t0}
          s_lshl_b32 {sT0}, {sN}, 6
          v_xor_b32 v{t_s1}, {sT0}, v{t_s1}""")
    k(f"""v_and_b32 v{t_ph}, 15, v0
          v_lshlrev_b32 v{t_ph}, 3, v{t_ph}
          v_lshl_add_u32 v{t_ph}, v{t1}, 8, v{t_ph}
          v_bfe_u32 v{t1}, v0, 4, 1
          v_lshl_add_u32 v{t_ph}, v{t1}, 9, v{t_ph}
          s_add_u32 {sT0}, {sW1K}, {L_WPHI}
          v_add_u32 v{t_ph}, {sT0}, v{t_ph}""")
    k.bg(4)
    xa = R.alloc(8, 1)
    k(f"""v_and_b32 v{t0}, 15, v0
          v_lshrrev_b32 v{t1}, 4, v0
          v_xor_b32 v1, v{t0}, v{t1}
          v_lshlrev_b32 v1, 4, v1
          v_lshl_add_u32 v1, v{t0}, 10, v1
          s_lshl_b32 {sT0}, {sW}, 14
          v_add_u32 v{xa}, {sT0}, v1
          v_xor_b32 v{xa+1}, 64, v{xa}
          v_xor_b32 v{xa+2}, 0x80, v{xa}
          v_xor_b32 v{xa+3}, 0xc0, v{xa}
          v_lshrrev_b32 v1, 5, v0
          v_lshl_add_u32 v1, {sJ}, 3, v1
          v_xor_b32 v1, v1, v{t0}
          v_lshlrev_b32 v1, 4, v1
          v_lshl_add_u32 v1, v{t0}, 10, v1
          v_and_b32 v{t1}, 1, v{t1}
          v_lshl_add_u32 v1, v{t1}, 3, v1
          v_add_u32 v{xa+4}, {sT0}, v1
          v_xor_b32 v{xa+5}, 32, v{xa+4}
          v_xor_b32 v{xa+6}, 64, v{xa+4}
          v_xor_b32 v{xa+7}, 0x60, v{xa+4}""")
    xs = R.alloc(64); xres = R.alloc(8); st = R.alloc(4)
    for i in range(4): k(f"v_mov_b32 v{st+i}, 0")
    k("s_waitcnt lgkmcnt(0)")
    k(f"s_add_u32 {sTAG}, {sTAG}, 1")
    k.wait(vm="x")
    stamp("x")
    k("s_barrier")
    hv = R.alloc(2)
    lh = k.label("nohello")
    k(f"""s_getreg_b32 {sT0}, hwreg(HW_REG_XCC_ID)
          s_and_b32 {sT0}, {sT0}, 7
          s_xor_b32 {sFAST}, {sTAG}, 0x5bd1e995
          s_andn2_b32 {sFAST}, {sFAST}, 7
          s_or_b32 {sFAST}, {sFAST}, {sT0}
          s_lshl_b32 {sT0}, {sJ}, 3
          s_add_u32 {sT0}, {sT0}, {sX}
          s_lshl_b32 {sT0}, {sT0}, 4
          s_add_u32 {sT0}, {sT0}, {sRR}
          s_lshl_b32 {sT0}, {sT0}, 3
          s_add_u32 {sT0}, {sT0}, {HELLO}
          s_cmp_eq_u32 {sW}, 0
          s_cselect_b32 {sT0}, {sT0}, {OOB}
          v_mov_b32 v{hv}, {sTAG}
          v_mov_b32 v{hv+1}, {sFAST}
          v_mov_b32 v1, {sT0}
          s_mov_b64 exec, 1""")
    k.vmem(f"buffer_store_dwordx2 {vr(hv,2)}, v1, {WS}, 0 offen sc1", "hello")
    k("s_mov_b64 exec, -1")
    for u in range(16):
        k.ds(f"ds_read_b128 {vr(xs+4*u,4)}, v{xa+(u&3)} offset:{(u>>2)*256}", ("xs", u))
    for T in range(4):
        k.ds(f"ds_read_b64 {vr(xres+2*T,2)}, v{xa+4+T}", "xres")
    k(f"""v_and_b32 v{t0}, 15, v0
          v_lshrrev_b32 v{t1}, 5, v0
          v_xor_b32 v{t0}, v{t0}, v{t1}
          v_lshlrev_b32 v{t0}, 4, v{t0}
          v_and_b32 v{t1}, 31, v0
          v_lshl_add_u32 v{t0}, v{t1}, 10, v{t0}
          s_lshl_b32 {sT0}, {sM}, 15
          v_add_u32 v{xa}, {sT0}, v{t0}""")
    for i in range(1, 8): k(f"v_xor_b32 v{xa+i}, {hex(32*i)}, v{xa}")
    for u in range(16):
        k.wait(lg=("xs", u))
        for i in range(4):
            k(f"v_dot2c_f32_bf16 v{st+(i&1)}, {sONE}, v{xs+4*u+i}\nv_dot2c_f32_bf16 v{st+2+(i&1)}, v{xs+4*u+i}, v{xs+4*u+i}")
        for s in (2*u, 2*u+1):
            k.ds(f"ds_read_b128 {ar(4*s,4)}, v{xa+(s&7)} offset:{(s>>3)*256}", "xf")
        if u % 2 == 0: k.bg()
    def quad_reduce(S, Q):
        k(f"""v_permlane32_swap_b32 v{S}, v{Q}
              v_add_f32 v{S}, v{S}, v{Q}
              v_mov_b32 v{Q}, v{S}
              v_permlane16_swap_b32 v{S}, v{Q}
              v_add_f32 v{S}, v{S}, v{Q}""")
    k(f"""v_add_f32 v{st}, v{st}, v{st+1}
          v_add_f32 v{st+2}, v{st+2}, v{st+3}""")
    quad_reduce(st, st + 2)
    k(f"""v_and_b32 v{t0}, 15, v0
          v_lshl_add_u32 v{t0}, {sW}, 4, v{t0}
          v_lshrrev_b32 v{t1}, 5, v0
          v_lshl_add_u32 v{t0}, v{t0}, 1, v{t1}
          v_lshlrev_b32 v{t0}, 2, v{t0}
          v_add_u32 v{t0}, {L_STAT}, v{t0}""")
    k.ds(f"ds_write_b32 v{t0}, v{st}", "stw")
    R.free(xs, 64); R.free(xa, 8)
    wph = R.alloc(8)
    k.wait(vm="wphi")
    for jh in range(2): k.ds(f"ds_read_b64_tr_b16 {vr(wph+2*jh,2)}, v{t_ph} offset:{jh*128}", "wph")
    k(f"""v_and_b32 v{t0}, 31, v0
          v_lshl_add_u32 v{t0}, {sM}, 5, v{t0}
          v_lshlrev_b32 v{t0}, 3, v{t0}
          v_add_u32 v{t0}, {L_STAT}, v{t0}
          v_and_b32 v{t1}, 16, v0
          v_cmp_ne_u32 vcc, 0, v{t1}""")
    k.wait(lg="all", vm=("wk", 0))
    k("s_barrier")
    R.free(t_ph)
    k.bgq += J(a_wq, WQKV, 3072, 2048, sl_v, "wv", [1, 2, 3]) + J(a_wq, WQKV, 3072, 0, sl_q, "wq", [0])
    k.ds(f"ds_read_b64 {vr(st,2)}, v{t0}", "st")
    for i in range(4):
        k(f"v_cndmask_b32 v{wph+4+i}, 0, v{wph+i}, vcc\nv_cndmask_b32 v{wph+i}, v{wph+i}, 0, vcc")
    baug = R.alloc(4)
    k(f"s_mov_b32 {sT2}, {fhex(1.0/512)}")
    k.wait(lg="st")
    ln_finish(st, st + 1, 512, baug)
    rstd = st + 1; sc = st + 2
    k(f"v_mul_f32 v{sc}, {fhex(LOG2E)}, v{rstd}")
    k(f"v_mov_b32 v{st}, v{rstd}")
    la1 = LAddr(k, [t_s1])
    def offs1(sl): return lambda s, jh: sl[s >> 3] * SLOT + (s & 7) * 2048 + jh * 512
    def chunk_sync(nm, first=True):
        def f(s):
            if s % 8 == 0 and (s or first):
                k.wait(vm=(nm, s >> 3)); k("s_barrier")
        return f
    def whole_sync(nm):
        def f(s):
            if s == 0:
                k.wait(vm=(nm, 3)); k("s_barrier")
        return f
    xf = lambda s: ar(4 * s, 4)
    acc = R.alloc(16)

    def phi(acc, ph):
        kb = R.alloc(8); P = R.alloc(16); E = R.alloc(32); mm = R.alloc(8)
        cvt(kb, acc, 8)
        k(f"{M32} {vr(P,16)}, {vr(wph,4)}, {vr(kb,4)}, 0")
        k(f"{M32} {vr(P,16)}, {vr(wph+4,4)}, {vr(kb+4,4)}, {vr(P,16)}")
        k.bg(2)
        for o, (op3, op2) in enumerate((("v_max3_f32", "v_max_f32"), ("v_min3_f32", "v_min_f32"))):
            for e in range(2):
                p = P + 8*e; d = mm + 2*o + e; t = mm + 4 + e
                k(f"""{op3} v{d}, v{p}, v{p+1}, v{p+2}
                      {op3} v{t}, v{p+3}, v{p+4}, v{p+5}
                      {op3} v{d}, v{p+6}, v{p+7}, v{d}
                      {op2} v{d}, v{d}, v{t}""")
        half_allreduce(mm, mm + 1, "v_max_f32")
        half_allreduce(mm + 2, mm + 3, "v_min_f32")
        pk("mul", mm, mm, sc, mods="op_sel_hi:[1,0]")
        pk("mul", mm + 2, mm + 2, sc, mods="op_sel_hi:[1,0]")
        k.bg()
        for e in range(2):
            for i in range(0, 8, 2):
                pk("fma", E + 16*e + i, P + 8*e + i, sc, mm, f"op_sel:[0,0,{e}] op_sel_hi:[1,0,{e}] neg_lo:[0,0,1] neg_hi:[0,0,1]")
                pk("fma", E + 16*e + 8 + i, P + 8*e + i, sc, mm + 2, f"op_sel:[0,0,{e}] op_sel_hi:[1,0,{e}] neg_lo:[1,0,0] neg_hi:[1,0,0]")
        for i in range(32):
            k(f"v_exp_f32 v{E+i}, v{E+i}")
            if i % 8 == 0: k.bg()
        for q in range(4):
            b = E + 8*q
            pk("add", P, b, b + 2); pk("add", P + 2, b + 4, b + 6); pk("add", P, P, P + 2)
            k(f"v_add_f32 v{mm+q}, v{P}, v{P+1}")
        k.bg()
        rc = lambda a: k(f"v_rcp_f32 v{a}, v{a}")
        half_allreduce(mm, mm + 1, "v_add_f32", rc)
        half_allreduce(mm + 2, mm + 3, "v_add_f32", rc)
        for q in range(4):
            for i in range(0, 8, 2):
                pk("mul", E + 8*q + i, E + 8*q + i, mm + (q & 2), mods=f"op_sel:[0,{q&1}] op_sel_hi:[1,{q&1}]")
            cvt(ph + 4*q, E + 8*q, 4)
            k.bg()
        R.free(kb, 8); R.free(P, 16); R.free(E, 32); R.free(mm, 8)

    gemm32([acc], xf, la1, offs1(sl_k), chunk_sync("wk", False), baug)
    stamp("kgemm")
    k("s_barrier")
    k.bgq += J(a_wq, WQKV, 3072, 0, sl_q, "wq", [1, 2, 3]) + J(a_w1k, WO, 1024, 0, sl_o, "wo", [0])
    a_hl = R.alloc()
    k(f"""v_bfe_u32 v{t0}, v0, 2, 3
          v_lshlrev_b32 v{t1}, 3, v{t0}
          v_add_u32 v{t1}, {sX}, v{t1}
          v_lshl_add_u32 v{t0}, {sJ}, 3, v{t0}
          v_cmp_le_u32 vcc, 32, v0
          v_cndmask_b32 v{t0}, v{t1}, v{t0}, vcc
          v_and_b32 v{t1}, 3, v0
          v_lshl_add_u32 v{t0}, v{t0}, 4, v{t1}
          v_lshlrev_b32 v{t0}, 3, v{t0}
          v_add_u32 v{a_hl}, {HELLO}, v{t0}""")
    ph = R.alloc(16)
    phi(acc, ph)
    pt = R.alloc(16); T0 = R.alloc(16); T1 = R.alloc(16)
    for e, T in enumerate((T0, T1)):
        k(f"{M32} {vr(T,16)}, {vr(ph+8*e,4)}, {vr(sel,4)}, 0")
        k(f"{M32} {vr(T,16)}, {vr(ph+8*e+4,4)}, {vr(sel+4,4)}, {vr(T,16)}")
    k.vmem(f"buffer_load_dwordx2 {vr(hv,2)}, v{a_hl}, {WS}, 0 offen sc1", "hl")
    k(f"v_sub_u32 v{a_clr}, v{a_clr}, v{l16}\nv_min_u32 v{t0}, 16, v0\nv_lshl_add_u32 v{a_clr}, v{t0}, 7, v{a_clr}")
    k.vmem(f"buffer_load_dword v2, v{a_clr}, {WS}, 0 offen sc1", "touch")
    cvt(pt, T0, 8); cvt(pt + 8, T1, 8)
    for T in (T0, T1): k(f"{M32} {vr(T,16)}, {vr(ones,4)}, {vr(sel+4,4)}, 0")
    stamp("phik")
    gemm32([acc], xf, la1, offs1(sl_v), whole_sync("wv"), baug, bgevery=4)
    vb = R.alloc(16)
    for i in range(0, 16, 2): pk("mul", acc + i, acc + i, st)
    cvt(vb, acc, 8)
    for e, T in enumerate((T0, T1)):
        k(f"{M32} {vr(T,16)}, {vr(vb+4*e,4)}, {vr(sel,4)}, {vr(T,16)}")
    def hello_chk():
        k(f"""v_xor_b32 v{hv+1}, {sFAST}, v{hv+1}
              v_lshrrev_b32 v{t0}, 3, v{hv+1}
              v_xor_b32 v{hv}, {sTAG}, v{hv}
              v_or_b32 v{t0}, v{t0}, v{hv}
              v_cmp_ne_u32 vcc, 0, v{t0}""")
    lok = k.label("hello_ok")
    k.wait(vm="hl"); hello_chk(); k(f"s_cbranch_vccz {lok}")
    keep = list(k.vm)
    spin([f"buffer_load_dwordx2 {vr(hv,2)}, v{a_hl}, {WS}, 0 offen sc1"], lambda: (k("s_waitcnt vmcnt(0)"), hello_chk()))
    k.vm = keep
    k(f"""{lok}:
          v_cmp_ne_u32 vcc, 0, v{hv+1}
          s_nop 1
          s_cmp_eq_u32 vcc_lo, 0
          s_cselect_b32 {sFAST}, {0 if force_slow else 1}, 0""")
    R.free(a_hl); R.free(hv, 2)
    a_p = R.alloc()
    k(f"""s_lshl_b32 {sT0}, {sX}, 3
          s_add_u32 {sT0}, {sT0}, {sJ}
          s_lshl_b32 {sT0}, {sT0}, 1
          s_add_u32 {sT0}, {sT0}, {sN}
          s_mul_i32 {sT0}, {sT0}, {2*8704}
          s_lshl_b32 {sT1}, {sRR}, 1
          s_add_u32 {sT1}, {sT1}, {sM}
          s_mul_i32 {sT1}, {sT1}, 272
          s_add_u32 {sT0}, {sT0}, {sT1}
          s_add_u32 {sT0}, {sT0}, {KV1}
          v_lshrrev_b32 v{t0}, 5, v0
          v_mul_u32_u24 v{t0}, 2176, v{t0}
          v_and_b32 v{t1}, 31, v0
          v_cmp_lt_u32 vcc, 16, v{t1}
          v_lshlrev_b32 v{t1}, 4, v{t1}
          v_add3_u32 v{a_p}, v{t0}, v{t1}, {sT0}
          v_mov_b32 v{t1}, {OOB}
          v_cndmask_b32 v{a_p}, v{a_p}, v{t1}, vcc
          s_movk_i32 {sT0}, 4352
          s_movk_i32 {sT1}, 8704
          s_movk_i32 {sT2}, {8704+4352}""")
    cvt(vb, T0, 8); cvt(vb + 8, T1, 8)
    for ks in range(2):
        for e, T in enumerate((T0, T1)):
            k(f"{M32} {vr(T,16)}, {vr(pt+8*e+4*ks,4)}, {vr(vb+8*e+4*ks,4)}, {vr(T,16) if ks else 0}")
    cvt(pt, T0, 8); cvt(pt + 8, T1, 8)
    publish([f"buffer_store_dwordx4 {vr(pt+4*q,4)}, v{a_p}, {WS}, {so} offen" for q, so in enumerate(("0", sT0, sT1, sT2))])
    stamp("kvpub")
    R.free(a_p); R.free(vb, 16)
    g1 = T0
    def chk1():
        k("s_waitcnt vmcnt(0)")
        k(f"v_max3_u32 v{t0}, v{g1}, v{g1+2}, v{g1+4}\nv_max3_u32 v{t1}, v{g1+6}, v{g1+8}, v{g1+10}")
        k(f"v_max3_u32 v{t0}, v{g1+12}, v{g1+14}, v{t0}\nv_max_u32 v{t0}, v{t0}, v{t1}\nv_cmp_eq_u32 vcc, -1, v{t0}")
    for i in range(4): k(f"v_mov_b32 v{T1+i}, 0")
    spin([f"buffer_load_dwordx2 {vr(g1+2*s,2)}, v{a_kv1g}, {WS}, 0 offen offset:{272*s} sc1" for s in range(8)], chk1)
    for s in range(8):
        for i in range(4): k(f"v_dot2c_f32_bf16 v{T1+i}, {sHI if i&1 else sLO}, v{g1+2*s+(i>>1)}")
    cvt(T1 + 4, T1, 2)
    k.vmem(f"buffer_store_dwordx2 {vr(T1+4,2)}, v{a_kv2p}, {WS}, 0 offen sc1", "kv2")
    stamp("a1")
    R.free(a_kv1g); R.free(a_clr); R.free(a_kv2p); R.free(pt, 16)
    k.bg_all()
    def qsync(s):
        if s == 0:
            k.wait(vm=("wq", 3)); k("s_barrier")
            k.bgq += J(a_w1k, WO, 1024, 0, sl_o, "wo", [1, 2, 3]) + J(a_win, WIN, 3584, 1792, sl_z2, "wz2", [0])
    gemm32([acc], xf, la1, offs1(sl_q), qsync, baug)
    k.bg_all()
    phi(acc, ph)
    R.free(t_s1); R.free(a_wq); R.free(baug, 4); R.free(wph, 8); R.free(st, 4)
    stamp("phiq")
    a_op = R.alloc(); a_fbp = R.alloc(); a_fl = R.alloc(); a_hp = R.alloc(); a_hsp = R.alloc(); a_z = R.alloc(); a_kw = R.alloc(2, 1); a_kr = R.alloc()
    k(f"""s_lshl_b32 {sT0}, {sG64}, 1
          s_add_u32 {sT0}, {sT0}, {sM}
          s_lshl_b32 {sT1}, {sJ}, 1
          s_add_u32 {sT1}, {sT1}, {sN}
          s_lshl_b32 {sT2}, {sT0}, 5
          s_add_u32 {sT2}, {sT2}, {sT1}
          s_lshl_b32 {sT3}, {sT2}, 10
          s_add_u32 {sT3}, {sT3}, {OB}
          v_bfe_u32 v{t0}, v0, 4, 1
          v_lshlrev_b32 v{t0}, 14, v{t0}
          v_lshrrev_b32 v{t1}, 5, v0
          v_lshl_or_b32 v{t0}, v{t1}, 8, v{t0}
          v_and_b32 v1, 15, v0
          v_lshlrev_b32 v{t1}, 4, v1
          v_add3_u32 v{a_op}, v{t0}, v{t1}, {sT3}
          s_lshl_b32 {sT2}, {sT2}, 2
          v_mov_b32 v{a_fbp}, {sT2}
          s_lshl_b32 {sT0}, {sT0}, 7
          v_lshl_add_u32 v{a_fl}, v1, 2, {sT0}""")
    k(f"""s_lshl_b32 {sT1}, {sT0}, 8
          s_lshl_b32 {sT2}, {sJ}, 12
          s_add_u32 {sT1}, {sT1}, {sT2}
          s_lshl_b32 {sT2}, {sN}, 8
          s_add_u32 {sT1}, {sT1}, {sT2}
          s_add_u32 {sT1}, {sT1}, {HB}
          v_lshrrev_b32 v{t0}, 4, v0
          v_lshlrev_b32 v{t0}, 9, v{t0}
          v_add3_u32 v{a_hp}, v{t0}, v{t1}, {sT1}""")
    k(f"""s_lshl_b32 {sT1}, {sT0}, 4
          s_lshl_b32 {sT2}, {sJ}, 8
          s_add_u32 {sT1}, {sT1}, {sT2}
          s_lshl_b32 {sT2}, {sN}, 7
          s_add_u32 {sT1}, {sT1}, {sT2}
          s_add_u32 {sT1}, {sT1}, {HS}
          v_lshrrev_b32 v{t0}, 5, v0
          v_lshl_add_u32 v{t0}, v1, 1, v{t0}
          v_lshl_add_u32 v{a_hsp}, v{t0}, 2, {sT1}
          v_and_b32 v{t0}, 16, v0
          v_cmp_ne_u32 vcc, 0, v{t0}
          v_mov_b32 v{t0}, {OOB}
          v_cndmask_b32 v{a_hsp}, v{a_hsp}, v{t0}, vcc""")
    k(f"""v_lshrrev_b32 v{t0}, 4, v0
          v_lshlrev_b32 v{a_z}, 7, v{t0}
          v_lshl_add_u32 v{a_z}, v1, 2, v{a_z}
          s_mul_i32 {sT1}, {sW}, 1088
          s_add_u32 {sT1}, {sT1}, {L_KVL}
          v_mul_u32_u24 v{t0}, 272, v{t0}
          v_add3_u32 v{a_kw}, v{t0}, v{t1}, {sT1}
          v_bfe_u32 v{t0}, v0, 2, 2
          v_mul_u32_u24 v{t0}, 272, v{t0}
          v_and_b32 v{t1}, 3, v0
          v_lshl_add_u32 v{t0}, v{t1}, 2, v{t0}
          v_lshrrev_b32 v{t1}, 5, v0
          v_lshlrev_b32 v1, 1, v{t1}
          v_add3_u32 v{a_kw+1}, v{t0}, v1, {sT1}
          v_mul_u32_u24 v{t1}, 272, v{t1}
          v_and_b32 v{t0}, 31, v0
          v_min_u32 v{t0}, 16, v{t0}
          v_lshlrev_b32 v{t0}, 4, v{t0}
          s_mul_i32 {sT1}, {sN}, 2176
          s_add_u32 {sT1}, {sT1}, {L_KVL}
          v_add3_u32 v{a_kr}, v{t0}, v{t1}, {sT1}
          s_lshl_b32 {sT0}, {sJ}, 2
          s_add_u32 {sT0}, {sT0}, {sW}
          s_mul_i32 {sT0}, {sT0}, 9216
          s_add_u32 {sT0}, {sT0}, {KV2}
          s_add_u32 {sT1}, {sT0}, 4096
          s_add_u32 {sT2}, {sT0}, 8192""")
    for o in (0, 512): k.vmem(f"buffer_load_dword v2, v{a_op}, {WS}, 0 offen offset:{o} sc1", "touch")
    for o in (0, 2048): k.vmem(f"buffer_load_dword v2, v{a_hp}, {WS}, 0 offen offset:{o} sc1", "touch")
    k.vmem(f"buffer_load_dword v2, v{a_hsp}, {WS}, 0 offen sc1", "touch")
    k.vmem(f"buffer_load_dword v2, v{a_zsp}, {WS}, 0 offen sc1", "touch")
    k(f"v_lshrrev_b32 v{t0}, 4, v0\nv_min_u32 v{t0}, 2, v{t0}\nv_lshl_add_u32 v{t0}, v{t0}, 13, v{a_fl}\ns_movk_i32 {sSO}, {FB}")
    k.vmem(f"buffer_load_dword v2, v{t0}, {WS}, {sSO} offen sc1", "touch")
    g2 = R.alloc(32); gz = R.alloc(4); sm = R.alloc(10)
    def chk2():
        for xx in range(8):
            k(f"s_waitcnt vmcnt({9-xx})")
            k(f"v_max3_u32 v{t0}, v{g2+4*xx}, v{g2+4*xx+2}, v{t0}" if xx else f"v_max_u32 v{t0}, v{g2}, v{g2+2}")
        k(f"s_waitcnt vmcnt(0)\nv_max3_u32 v{t0}, v{gz}, v{gz+1}, v{t0}\nv_cmp_eq_u32 vcc, -1, v{t0}")
    for i in range(10): k(f"v_mov_b32 v{sm+i}, 0")
    spin([f"buffer_load_dwordx4 {vr(g2+4*xx,4)}, v{l16}, {WS}, {sT1 if xx>>2 else sT0} offen offset:{1024*(xx&3)} sc1" for xx in range(8)]
         + [f"buffer_load_dword v{gz+u}, v{a_z}, {WS}, {sT2} offen offset:{512*u} sc1" for u in range(2)], chk2)
    stamp("a2")
    for u in range(2):
        k(f"v_dot2c_f32_bf16 v{sm+8}, {sLO}, v{gz+u}\nv_dot2c_f32_bf16 v{sm+9}, {sHI}, v{gz+u}")
    for xx in range(8):
        for i in range(8): k(f"v_dot2c_f32_bf16 v{sm+i}, {sHI if i&1 else sLO}, v{g2+4*xx+(i>>1)}")
    quad_reduce(sm + 8, sm + 9)
    cvt(gz, sm, 4)
    k.ds(f"ds_write_b128 v{a_kw}, {vr(gz,4)}", "kw")
    k(f"v_cvt_pk_bf16_f32 v{sm+8}, v{sm+8}, v{sm+8}")
    k.ds(f"ds_write_b16 v{a_kw+1}, v{sm+8} offset:256", "kw")
    k.wait(lg="all"); k("s_barrier")
    for q in range(4):
        k.ds(f"ds_read_b128 {vr(g2+4*q,4)}, v{a_kr} offset:{(q>>1)*1088+(q&1)*544}", ("kr", q))
    for e, T in enumerate((T0, T1)):
        k.wait(lg=("kr", 2*e)); k(f"{M32} {vr(T,16)}, {vr(g2+8*e,4)}, {vr(ph+8*e,4)}, 0")
        k.wait(lg=("kr", 2*e+1)); k(f"{M32} {vr(T,16)}, {vr(g2+8*e+4,4)}, {vr(ph+8*e+4,4)}, {vr(T,16)}")
    tagv = R.alloc(); k(f"v_mov_b32 v{tagv}, {sTAG}")
    for i in range(8):
        k(f"v_lshlrev_b32 v{acc+2*i}, 16, v{xres+i}\nv_and_b32 v{acc+2*i+1}, 0xffff0000, v{xres+i}")
    for T in (T0, T1): k(f"v_add_f32 v{T+8}, {fhex(1e-6)}, v{T+8}")
    for T in (T0, T1): k(f"v_rcp_f32 v{T+8}, v{T+8}")
    for e, T in enumerate((T0, T1)):
        for i in range(0, 8, 2): pk("mul", T + i, T + i, T + 8, mods="op_sel_hi:[1,0]")
        cvt(g2 + 4*e, T, 4)
    k(f"s_movk_i32 {sT0}, {FB}")
    publish([f"buffer_store_dwordx4 {vr(g2+4*e,4)}, v{a_op}, {WS}, 0 offen offset:{512*e}" for e in range(2)],
            f"buffer_store_dword v{tagv}, v{a_fbp}, {WS}, {sT0} offen")
    stamp("opub")
    R.free(g2, 32); R.free(gz, 4); R.free(sm, 10); R.free(T0, 16); R.free(T1, 16); R.free(ph, 16)
    R.free(a_op); R.free(a_z); R.free(a_kw, 2); R.free(a_kr)
    k("s_barrier")
    of = R.alloc(64)
    la16 = LAddr(k, [t_16 + i for i in range(4)])
    def pre3():
        poll_flag(a_fl, sT0)
        stamp("b")
        k(f"""s_lshl_b32 {sT0}, {sG64}, 2
              s_add_u32 {sT0}, {sT0}, {sW}
              s_lshl_b32 {sT0}, {sT0}, 14
              s_add_u32 {sT0}, {sT0}, {OB}""")
        for s in range(16):
            if s and s % 4 == 0: k(f"s_add_u32 {sT0}, {sT0}, 4096")
            k.vmem(f"buffer_load_dwordx4 {vr(of+4*s,4)}, v{l16}, {WS}, {sT0} offen offset:{1024*(s&3)} sc1", ("o", s))
        k.bgq += J(a_win, WIN, 3584, 1792, sl_z2, "wz2", [1, 2, 3]) + J(a_win, WIN, 3584, 0, sl_z1, "wz1", [0])
        k.bg(opt.get("bg3", 0))
    gemm16(acc, 16, lambda s: vr(of+4*s, 4), lambda s: ("o", s), la16,
           lambda s, jh: sl_o[s >> 2] * SLOT + (s & 3) * 4096 + jh * 512, pre3)
    R.free(of, 64)
    hk = xres
    cvt(hk, acc, 8)
    st = R.alloc(4)
    for i in range(4): k(f"v_mov_b32 v{st+i}, 0")
    for i in range(8):
        k(f"v_dot2c_f32_bf16 v{st+(i&1)}, {sONE}, v{hk+i}\nv_dot2c_f32_bf16 v{st+2+(i&1)}, v{hk+i}, v{hk+i}")
    k(f"v_add_f32 v{st}, v{st}, v{st+1}\nv_add_f32 v{st+2}, v{st+2}, v{st+3}")
    quad_reduce(st, st + 2)
    k(f"s_movk_i32 {sT0}, {FC}")
    publish([f"buffer_store_dwordx4 {vr(hk+4*p,4)}, v{a_hp}, {WS}, 0 offen offset:{2048*p}" for p in range(2)]
            + [f"buffer_store_dword v{st}, v{a_hsp}, {WS}, 0 offen"],
            f"buffer_store_dword v{tagv}, v{a_fbp}, {WS}, {sT0} offen")
    stamp("hpub")
    R.free(a_hp); R.free(a_hsp); R.free(a_fbp); R.free(acc, 16)
    k(f"""s_or_b32 {sT1}, s2, {sW}
          s_cmp_eq_u32 {sT1}, 0
          s_cselect_b32 {sT1}, {EPOCH}, {OOB}
          v_mov_b32 v1, {sT1}""")
    k.vmem(f"buffer_store_dword v{tagv}, v1, {WS}, 0 offen", "epoch")
    k(f"s_cmp_ge_u32 {sC}, 14\ns_cbranch_scc1 L_spare")
    saved_free = set(R.free_); la16_base = la16.base
    k.bg_all()
    a_sig = R.alloc(); a_h = R.alloc(); a_f4 = R.alloc(); a_u = R.alloc(); bsp = R.alloc()
    k(f"""v_and_b32 v{t0}, 19, v0
          v_bfe_u32 v{t1}, v0, 2, 1
          v_lshl_or_b32 v{t0}, v{t1}, 3, v{t0}
          v_bfe_u32 v{t1}, v0, 3, 1
          v_lshl_or_b32 v{a_sig}, v{t1}, 2, v{t0}
          v_and_b32 v{t1}, 32, v0
          v_or_b32 v{t0}, v{a_sig}, v{t1}
          v_lshlrev_b32 v{a_h}, 4, v{t0}
          s_lshl_b32 {sT1}, {sG128}, 2
          s_add_u32 {sT1}, {sT1}, {sW}
          s_lshl_b32 {sT2}, {sT1}, 7
          v_and_b32 v1, 15, v0
          v_lshl_add_u32 v{a_f4}, v1, 2, {sT2}
          s_lshl_b32 {sT2}, {sT1}, 6
          v_lshlrev_b32 v{t0}, 1, v{a_sig}""")
    k.vmem(f"buffer_load_ushort v{bsp}, v{t0}, {BSP}, {sT2} offen", "bsp")
    k(f"""s_mul_i32 {sT2}, {sT1}, {2*28*1024}
          s_lshl_b32 {sT3}, {sC}, 11
          s_add_u32 {sT2}, {sT2}, {sT3}
          s_add_u32 {sT2}, {sT2}, {UB}
          v_lshrrev_b32 v{t0}, 4, v{a_sig}
          v_mul_u32_u24 v{t0}, {28*1024}, v{t0}
          v_lshl_add_u32 v{t0}, v{t1}, 3, v{t0}
          v_and_b32 v1, 15, v{a_sig}
          v_lshlrev_b32 v1, 4, v1
          v_add3_u32 v{a_u}, v{t0}, v1, {sT2}
          v_lshlrev_b32 v{t0}, 3, v{a_sig}
          v_lshl_add_u32 v{a_sig}, v{t1}, 5, v{t0}""")
    hf = R.alloc(128); z2 = R.alloc(32); baug = R.alloc(4); hs = R.alloc(8)
    k.wait(vm="all"); k("s_barrier")
    k.bgq += J(a_win, WIN, 3584, 0, sl_z1, "wz1", [1, 2, 3])
    poll_flag(a_f4, sT0)
    stamp("c")
    k(f"""s_lshl_b32 {sT2}, {sT1}, 11
          s_add_u32 {sT2}, {sT2}, {HS}
          s_lshl_b32 {sT0}, {sT1}, 15
          s_add_u32 {sT0}, {sT0}, {HB}""")
    for u in range(4): k.vmem(f"buffer_load_dwordx2 {vr(hs+2*u,2)}, v{a_sig}, {WS}, {sT2} offen offset:{256*u} sc1", "hs")
    def hload(s):
        def f():
            if s and s % 4 == 0: k(f"s_add_u32 {sT0}, {sT0}, 4096")
            k.vmem(f"buffer_load_dwordx4 {vr(hf+4*s,4)}, v{a_h}, {WS}, {sT0} offen offset:{1024*(s&3)} sc1", ("h", s))
        f.tag = ("h", s)
        return f
    k.bgq = [hload(s) for s in range(32)] + k.bgq
    k.bg(10)
    k.wait(vm="hs")
    pk("add", hs, hs, hs + 2); pk("add", hs + 4, hs + 4, hs + 6); pk("add", st, hs, hs + 4)
    half_allreduce(st, st + 1, "v_add_f32")
    k(f"s_mov_b32 {sT2}, {fhex(1.0/512)}")
    ln_finish(st, st + 1, 512, baug)
    k(f"v_mov_b32 v{st}, v{st+1}")
    R.free(hs, 8)
    la4 = LAddr(k, [t_s4, t_s4 + 1])
    def offs4(sl): return lambda s, jh: sl[s >> 3] * SLOT + ((s >> 1) & 3) * 4096 + jh * 2048 + (s & 1) * 1024
    gemm32([z2, z2 + 16], lambda s: vr(hf+4*s, 4), la4, offs4(sl_z2), lambda s: None, baug, bwait=lambda s: ("h", s), bgevery=1, ahead=1)
    stamp("z2gemm")
    gc = R.alloc(2)
    C1 = -2 * 0.7978845608028654 * LOG2E
    k(f"v_mov_b32 v{gc}, {fhex(C1)}\nv_mov_b32 v{gc+1}, {fhex(C1*0.044715)}")
    def gelu(z):
        t = R.alloc(8)
        for b in range(0, 32, 8):
            for i in range(0, 8, 2): pk("mul", z+b+i, z+b+i, st)
            for i in range(0, 8, 2): pk("mul", t+i, z+b+i, z+b+i)
            for i in range(0, 8, 2): pk("fma", t+i, t+i, gc, gc, "op_sel:[0,1,0] op_sel_hi:[1,1,0]")
            for i in range(0, 8, 2): pk("mul", t+i, t+i, z+b+i)
            k.bg()
            for i in range(8): k(f"v_exp_f32 v{t+i}, v{t+i}")
            for i in range(0, 8, 2): k(f"v_pk_add_f32 {vr(t+i,2)}, {vr(t+i,2)}, 1.0 op_sel_hi:[1,0]")
            for i in range(8): k(f"v_rcp_f32 v{t+i}, v{t+i}")
            k.bg()
            for i in range(0, 8, 2): pk("mul", z+b+i, z+b+i, t+i)
        R.free(t, 8)
    gelu(z2)
    zs = R.alloc(14)
    pk("add", zs, z2, z2 + 2); pk("mul", zs + 2, z2, z2); pk("fma", zs + 2, z2 + 2, z2 + 2, zs + 2)
    for i in range(4, 32, 2):
        pk("add", zs, zs, z2 + i); pk("fma", zs + 2, z2 + i, z2 + i, zs + 2)
    k(f"""v_add_f32 v{zs}, v{zs}, v{zs+1}
          v_add_f32 v{zs+2}, v{zs+2}, v{zs+3}
          v_permlane32_swap_b32 v{zs}, v{zs+2}
          v_add_f32 v{t1}, v{zs}, v{zs+2}""")
    publish([f"buffer_store_dword v{t1}, v{a_zsp}, {WS}, 0 offen"])
    stamp("zspub")
    k(f"""v_and_b32 v{t0}, 31, v0
          v_lshlrev_b32 v{t0}, 3, v{t0}
          v_lshrrev_b32 v1, 5, v0
          v_mul_u32_u24 v1, 1792, v1
          v_add_u32 v{a_zsp}, v{t0}, v1
          s_lshl_b32 {sT2}, {sT1}, 12
          s_add_u32 {sT0}, {sT2}, {ZS}""")
    def chkz():
        k("s_waitcnt vmcnt(0)")
        k(f"v_max_u32 v{t0}, v{zs}, v{zs+1}")
        for u in range(1, 7): k(f"v_max3_u32 v{t0}, v{zs+2*u}, v{zs+2*u+1}, v{t0}")
        k(f"v_cmp_eq_u32 vcc, -1, v{t0}")
    spin([f"buffer_load_dwordx2 {vr(zs+2*u,2)}, v{a_zsp}, {WS}, {sT0} offen offset:{256*u} sc1" for u in range(7)], chkz)
    stamp("d")
    pk("add", zs, zs, zs+2); pk("add", zs+4, zs+4, zs+6); pk("add", zs+8, zs+8, zs+10)
    pk("add", zs, zs, zs+12); pk("add", zs+4, zs+4, zs+8); pk("add", zs, zs, zs+4)
    half_allreduce(zs, zs + 1, "v_add_f32")
    k(f"s_mov_b32 {sT2}, {fhex(1.0/896)}")
    ln_finish(zs, zs + 1, 896, None)
    k(f"v_mul_f32 v{zs}, v{zs}, v{zs+1}")
    zb = R.alloc(16)
    for ft in range(2):
        for i in range(0, 16, 2):
            pk("fma", z2+16*ft+i, z2+16*ft+i, zs, zs, "op_sel:[0,1,0] op_sel_hi:[1,1,0] neg_lo:[0,0,1] neg_hi:[0,0,1]")
        cvt(zb + 8*ft, z2 + 16*ft, 8)
        k(f"{M32} {vr(z2+16*ft,16)}, {vr(zb+8*ft,4)}, {vr(sel,4)}, 0")
        k(f"{M32} {vr(z2+16*ft,16)}, {vr(zb+8*ft+4,4)}, {vr(sel+4,4)}, {vr(z2+16*ft,16)}")
    k(f"""s_lshl_b32 {sT0}, {sC}, 18
          s_lshl_b32 {sT2}, {sT1}, 12
          s_add_u32 {sT0}, {sT0}, {sT2}
          s_add_u32 {sT0}, {sT0}, {Z2N}""")
    for ft in range(2):
        cvt(zb + 8*ft, z2 + 16*ft, 8)
        for ks in range(2):
            k.vmem(f"buffer_store_dwordx4 {vr(zb+8*ft+4*ks,4)}, v{l16}, {WS}, {sT0} offen offset:{(2*ks+ft)*1024} sc1", "z2n")
    k(f"""s_lshr_b32 {sT0}, {sG128}, 3
          s_lshl_b32 {sT2}, {sC}, 1
          s_add_u32 {sT0}, {sT0}, {sT2}
          s_lshl_b32 {sT0}, {sT0}, 5
          s_and_b32 {sT2}, {sG128}, 7
          s_add_u32 {sT0}, {sT0}, {sT2}
          s_lshl_b32 {sT0}, {sT0}, 2
          s_add_u32 {sT0}, {sT0}, {FE}
          s_cmp_eq_u32 {sW}, 0
          s_cselect_b32 {sT0}, {sT0}, {OOB}
          v_mov_b32 v1, {sT0}""")
    k.bg_all()
    k.wait(vm="all"); k("s_barrier")
    k("s_mov_b64 exec, 1")
    k.vmem(f"buffer_store_dword v{tagv}, v1, {WS}, 0 offen sc1", "fe")
    k("s_mov_b64 exec, -1")
    stamp("z2pub")
    R.free(zb, 16); R.free(zs, 14); R.free(a_zsp); R.free(a_sig); R.free(a_h); R.free(sel, 8); R.free(ones, 4)
    a_sp = R.alloc(2, 1); r_sp = R.alloc(4, 1)
    k(f"""v_bfe_u32 v{t0}, v0, 3, 2
          v_lshrrev_b32 v{t1}, 5, v0
          v_lshl_or_b32 v{t0}, v{t1}, 3, v{t0}
          v_lshlrev_b32 v{t0}, 12, v{t0}
          v_lshrrev_b32 v1, 4, v0
          v_xor_b32 v1, v1, v0
          v_and_b32 v1, 7, v1
          v_lshl_or_b32 v{t0}, v1, 4, v{t0}
          s_lshl_b32 {sT0}, {sT1}, 17
          s_and_b32 {sT2}, {sC}, 1
          s_lshl_b32 {sT2}, {sT2}, 11
          s_add_u32 {sT0}, {sT0}, {sT2}
          v_add_u32 v{a_sp}, {sT0}, v{t0}
          v_xor_b32 v{a_sp+1}, 64, v{a_sp}
          v_bfe_u32 v{t0}, v0, 1, 3
          v_xor_b32 v{t0}, v{t0}, v{t1}
          v_lshlrev_b32 v{t0}, 4, v{t0}
          v_and_b32 v1, 31, v0
          v_lshl_or_b32 v{t0}, v1, 7, v{t0}
          s_lshl_b32 {sW1K}, {sW}, 12
          v_add_u32 v{r_sp}, {sW1K}, v{t0}
          v_xor_b32 v{r_sp+1}, 32, v{r_sp}
          v_xor_b32 v{r_sp+2}, 64, v{r_sp}
          v_xor_b32 v{r_sp+3}, 0x60, v{r_sp}""")
    lasp = LAddr(k, [r_sp + i for i in range(4)])
    sl_sp = [1, 2, 3]
    def sp_dma(b):
        return [dma(a_sp + (ii & 1), WSP, (4*(ii & 1) + 16*(ii >> 1)) * 4096 + b * 128, sl_sp[b % 3] * SLOT + ii * 1024, ("sp", b)) for ii in range(4)]
    def sp_rd(b):
        def f():
            k.wait(vm=("sp", b))
            for s in range(4):
                o = lasp.off(sl_sp[b % 3] * SLOT)
                k.ds(f"ds_read_b128 {ar(16*b+4*s,4)}, v{r_sp+s} offset:{o}", ("spr", b))
        return f
    def sp_rel(b): return lambda: k.wait(lg=("spr", b))
    for b in range(16):
        if b >= 3: k.bgq.append(sp_rel(b - 3))
        k.bgq += sp_dma(b)
        if b >= 2: k.bgq.append(sp_rd(b - 2))
    k.bgq += [sp_rd(14), sp_rd(15)]
    k(f"""s_xor_b32 {sT0}, {sC}, 1
          s_lshl_b32 {sT2}, {sG128}, 4
          s_add_u32 {sT0}, {sT0}, {sT2}
          s_lshl_b32 {sT0}, {sT0}, 14
          s_add_u32 {sT0}, {sT0}, {sW1K}
          s_add_u32 s3, {sT0}, {GP}
          v_lshlrev_b32 v{t0}, 6, v0""")
    k.vmem(f"buffer_load_dword v2, v{t0}, {WS}, s3 offen sc1", "touch")
    for o in (0, 512, 1024, 1536): k.vmem(f"buffer_load_dword v2, v{a_u}, {WS}, 0 offen offset:{o} sc1", "touch")
    a_fg = R.alloc(); a_fe = R.alloc()
    k(f"""s_add_u32 {sT0}, {sT2}, {sC}
          s_lshl_b32 {sT0}, {sT0}, 5
          s_add_u32 {sT0}, {sT0}, {sW}
          s_lshl_b32 {sT0}, {sT0}, 2
          s_add_u32 {sT0}, {sT0}, {FG}
          v_mov_b32 v{a_fg}, {sT0}
          s_and_b32 {sT0}, {sC}, 1
          s_and_b32 {sT2}, {sC}, 14
          s_lshl_b32 {sT2}, {sT2}, 1
          s_add_u32 {sT0}, {sT0}, {sT2}
          s_lshl_b32 {sT0}, {sT0}, 7
          s_add_u32 {sT0}, {sT0}, {FE}
          v_bfe_u32 v{t0}, v0, 3, 1
          v_lshlrev_b32 v{t0}, 8, v{t0}
          v_and_b32 v{t1}, 7, v0
          v_lshlrev_b32 v{t1}, 2, v{t1}
          v_add3_u32 v{a_fe}, v{t0}, v{t1}, {sT0}""")
    k.vmem(f"buffer_load_dword v2, v{a_fg}, {WS}, 0 offen sc1", "touch")
    z1 = z2
    gemm32([z1, z1 + 16], lambda s: vr(hf+4*s, 4), la4, offs4(sl_z1), lambda s: None, baug, bgevery=1, ahead=1)
    R.free(hf, 128); R.free(baug, 4)
    gelu(z1)
    stamp("z1")
    k.bg_all()
    R.free(gc, 2); R.free(st, 4); R.free(t_s4, 2); R.free(a_sp, 2); R.free(r_sp, 4); R.free(a_win)
    k.wait(lg="all", vm="all"); k("s_barrier")
    stamp("wsp")
    poll_flag(a_fe, "0")
    stamp("e")
    R.free(a_fe)
    RING = 7 * SLOT; NS = 6
    ga = R.alloc(32); fb = R.alloc(64); pw = R.alloc(32); pb = R.alloc(16); a_ring = R.alloc()
    sZ, sRG = sT0, sT2
    k(f"""s_xor_b32 {sT0}, {sC}, 1
          s_lshl_b32 {sT0}, {sT0}, 18
          s_and_b32 {sT2}, {sC}, 1
          s_lshl_b32 {sT2}, {sT2}, 17
          s_add_u32 {sT0}, {sT0}, {sT2}
          s_lshl_b32 {sRG}, {sW}, 11
          s_add_u32 {sT0}, {sT0}, {sRG}
          s_add_u32 {sZ}, {sT0}, {Z2N}
          s_lshl_b32 {sW1K}, {sW}, 10
          v_add_u32 v{a_ring}, {RING}, v{l16}""")
    def zdma(ch, part):
        if ch >= 32: return
        if part == 0:
            if ch == 16: k(f"s_sub_u32 {sZ}, {sZ}, {15*8192}\ns_xor_b32 {sZ}, {sZ}, {1<<18}")
            elif ch: k(f"s_add_u32 {sZ}, {sZ}, 8192")
            k(f"s_add_u32 m0, {sRG}, {RING + (ch % NS) * 8192}")
        k.vmem(f"buffer_load_dwordx4 v{l16}, {WS}, {sZ} offen offset:{1024*part} sc1 lds", ("z", ch))
    sl_out = [0, 1, 2, 3, 4, 5, 6]
    out_jobs = J(a_w1k, WOUT, 1024, 0, sl_out, "wout", range(7))
    for ch in range(NS): zdma(ch, 0); zdma(ch, 1)
    k.wait(vm=("z", 0)); k("s_barrier")
    for f in range(8): k.ds(f"ds_read_b128 {vr(fb+4*f,4)}, v{a_ring} offset:{f*1024}", "zr")
    k(f"v_lshlrev_b32 v{bsp}, 16, v{bsp}")
    side = []
    for ch in range(32):
        cur = fb + 32 * (ch & 1); nxt = fb + 32 * ((ch + 1) & 1)
        k.wait(vm=("z", ch + 1), lg="all"); k("s_barrier")
        if ch == 16:
            cvt(pb, ga, 16)
            publish([f"buffer_store_dwordx4 {vr(pb+4*q,4)}, v{l16}, {WS}, s3 offen offset:{1024*q}" for q in range(4)])
            k(f"v_xor_b32 v{t0}, 128, v{a_fg}")
        if ch == 18:
            k.wait(vm="pub")
            publish([f"buffer_store_dword v{tagv}, v{t0}, {WS}, 0 offen"])
        if ch == 24:
            keepvm = list(k.vm)
            poll_flag(a_fg, "0")
            k(f"s_xor_b32 s3, s3, {1<<14}")
            for q in range(4): k.vmem(f"buffer_load_dwordx4 {vr(pb+4*q,4)}, v{l16}, {WS}, s3 offen offset:{1024*q} sc1", "pl")
            side += [f"v_mov_b32 v{pw+i}, v{bsp}" for i in range(32)]
        if ch == 27:
            k.wait(vm="pl")
            side += [f"v_dot2c_f32_bf16 v{pw+i}, {sHI if i&1 else sLO}, v{pb+(i>>1)}" for i in range(32)]
            side += [f"v_mul_f32 v{pw+i}, v{pw+i}, v{z1+i}" for i in range(32)]
        for m in range(8):
            ks, ft = m >> 1, m & 1
            first = (ch % 16 == 0 and ks == 0)
            k(f"{M32} {vr(ga+16*ft,16)}, {vr(cur+4*m,4)}, {ar(16*(ch%16)+4*ks,4)}, {0 if first else vr(ga+16*ft,16)}")
            if m < 4 and ch + 1 < 32:
                for f in (2*m, 2*m+1):
                    k.ds(f"ds_read_b128 {vr(nxt+4*f,4)}, v{a_ring} offset:{((ch+1)%NS)*8192+f*1024}", "zr")
            if m == 4: zdma(ch + NS, 0)
            if m == 5: zdma(ch + NS, 1)
            if m == 6 and out_jobs and ch >= 2: out_jobs.pop(0)()
            for _ in range(2 if m < 6 else 4):
                if side: k(side.pop(0))
    assert not side and not out_jobs
    stamp("s6")
    for i in range(0, 32, 2): pk("fma", pw + i, z1 + i, ga + i, pw + i)
    cvt(pb, pw, 16)
    k(f"""s_lshl_b32 {sT0}, {sT1}, 5
          s_add_u32 {sT0}, {sT0}, {sC}
          s_lshl_b32 {sT0}, {sT0}, 2
          s_add_u32 {sT0}, {sT0}, {FF}
          v_mov_b32 v{t0}, {sT0}""")
    publish([f"buffer_store_dwordx4 {vr(pb+4*q,4)}, v{a_u}, {WS}, 0 offen offset:{512*q}" for q in range(4)],
            f"buffer_store_dword v{tagv}, v{t0}, {WS}, 0 offen")
    stamp("upub")
    k("s_branch L_s7")
    k("L_spare:")
    mainvm = list(k.vm); k.vm = []
    k("s_waitcnt vmcnt(0)\ns_barrier")
    for jb in J(a_w1k, WOUT, 1024, 0, sl_out, "wout", range(7)): jb()
    k("s_waitcnt vmcnt(0)")
    if ts:
        for i in range(stamps.index("hpub") + 1, len(stamps)): k(f"s_memrealtime s[{sreg(i)}:{sreg(i)+1}]")
    k.vm = mainvm
    k("L_s7:")
    R.free_ = saved_free; la16.base = la16_base
    k("s_barrier")
    uf = R.alloc(112); acc = R.alloc(16)
    for i in range(8):
        k(f"v_lshlrev_b32 v{acc+2*i}, 16, v{hk+i}\nv_and_b32 v{acc+2*i+1}, 0xffff0000, v{hk+i}")
    k(f"""v_and_b32 v{t0}, 15, v0
          v_min_u32 v{t0}, 13, v{t0}
          v_and_b32 v{a_fl}, 0xffffff80, v{a_fl}
          v_lshl_add_u32 v{a_fl}, v{t0}, 2, v{a_fl}
          s_mov_b32 {sT0}, {FF}""")
    def pre7():
        poll_flag(a_fl, sT0)
        stamp("f")
        k(f"""s_lshl_b32 {sT0}, {sG64}, 2
              s_add_u32 {sT0}, {sT0}, {sW}
              s_mul_i32 {sT0}, {sT0}, {28*1024}
              s_add_u32 {sT0}, {sT0}, {UB}""")
        for s in range(28):
            if s and s % 4 == 0: k(f"s_add_u32 {sT0}, {sT0}, 4096")
            k.vmem(f"buffer_load_dwordx4 {vr(uf+4*s,4)}, v{l16}, {WS}, {sT0} offen offset:{1024*(s&3)} sc1", ("u", s))
    gemm16(acc, 28, lambda s: vr(uf+4*s, 4), lambda s: ("u", s), la16,
           lambda s, jh: sl_out[s >> 2] * SLOT + (s & 3) * 4096 + jh * 512, pre7)
    k(f"""s_mul_i32 {sT0}, {sW}, 2304
          s_add_u32 {sT0}, {sT0}, {RING}
          v_and_b32 v{t0}, 15, v0
          v_mul_u32_u24 v{t0}, 144, v{t0}
          v_lshrrev_b32 v{t1}, 4, v0
          v_lshlrev_b32 v{t1}, 3, v{t1}
          v_add3_u32 v{t0}, v{t0}, v{t1}, {sT0}
          v_lshrrev_b32 v{t1}, 3, v0
          v_mul_u32_u24 v1, 144, v{t1}
          v_and_b32 v2, 7, v0
          v_lshlrev_b32 v2, 4, v2
          v_add3_u32 v1, v1, v2, {sT0}
          v_lshl_add_u32 v2, v{t1}, 10, v2
          s_lshl_b32 {sT0}, {sG64}, 2
          s_add_u32 {sT0}, {sT0}, {sW}
          s_lshl_b32 {sT0}, {sT0}, 14
          s_lshl_b32 {sT1}, {sJ}, 7
          s_add_u32 {sT0}, {sT0}, {sT1}
          s_add_u32 {sT1}, {sT0}, 8192""")
    cvt(hk, acc, 8)
    for T in range(4): k.ds(f"ds_write_b64 v{t0}, {vr(hk+2*T,2)} offset:{32*T}", "ow")
    k.wait(lg="all")
    for u in range(2): k.ds(f"ds_read_b128 {vr(acc+4*u,4)}, v1 offset:{1152*u}", ("or", u))
    for u in range(2):
        k.wait(lg=("or", u))
        k.vmem(f"buffer_store_dwordx4 {vr(acc+4*u,4)}, v2, {OUT}, {sT1 if u else sT0} offen", "out")
    if ts:
        k("s_waitcnt vmcnt(0)")
        stamp("end")
        k(f"""s_waitcnt lgkmcnt(0)
              s_lshl_b32 {sT0}, s2, 2
              s_add_u32 {sT0}, {sT0}, {sW}
              s_lshl_b32 {sT0}, {sT0}, 7
              s_add_u32 {sT0}, {sT0}, {TS}
              v_mov_b32 v1, 0
              s_mov_b64 exec, 1""")
        for i in range(len(stamps)):
            k(f"v_mov_b32 v2, s{sfinal(i)}\nbuffer_store_dword v2, v1, {WS}, {sT0} offen offset:{4*i}")
        k(f"v_mov_b32 v2, s100\nbuffer_store_dword v2, v1, {WS}, {sT0} offen offset:120")
        k(f"v_mov_b32 v2, {sFAST}\nbuffer_store_dword v2, v1, {WS}, {sT0} offen offset:124")
    if opt.get("hold"):
        k(f"""L_hold:
              s_memrealtime s[98:99]
              s_waitcnt lgkmcnt(0)
              s_sub_u32 s98, s98, s100
              s_cmp_lt_u32 s98, {opt["hold"]}
              s_cbranch_scc1 L_hold""")
    k("L_abort:\nL_end:\ns_endpgm")
    for l in tail: k(l)
    k("L_codeend:")
    body = k.text()
    gen.stamps = stamps; gen.hw = R.hw; gen.nops = k.nops_added
    return wrap(body, lds=160*1024, header=HDR)

if __name__ == "__main__":
    open("k1.s", "w").write(gen())
    print("vgpr high water", gen.hw, "nops", gen.nops)
    open("k1_ts.s", "w").write(gen(ts=True))
    import json; json.dump(gen.stamps, open("k1_ts.s.json", "w"))
    open("k1_slow.s", "w").write(gen(force_slow=True))
    open("k1_hold100.s", "w").write(gen(opt={"hold": 10000}))
    open("k1_hold45.s", "w").write(gen(opt={"hold": 4500}))
    open("k1_hold42.s", "w").write(gen(opt={"hold": 4200}))
```

```python
import sys, struct
from kern import K
from asmlib import wrap, NAME
HDR = open("cdna_kernels/%s.s.ref" % NAME).read().split("; Override")[0]

EPOCH, HELLO = 0, 0x1000
FB, FC, FF, FG, FE = 0x4000, 0x6000, 0x8000, 0xA000, 0x12000
HS, ZS, KV2, KV1 = 0x20000, 0x40000, 0x80000, 0x100000
OB, HB, Z2N, GP, UB, TS = 0x400000, 0x600000, 0x800000, 0xC00000, 0x1000000, 0x2000000
WS_SIZE = 0x2100000
OOB = 0x7ff00000
X, WQKV, WPHI, WO, WIN, WSP, BSP, WOUT, OUT, WS = [f"s[{4+4*i}:{7+4*i}]" for i in range(10)]
sW, sX, sRR, sJ, sC, sG64, sG128, sM, sN, sTAG, sFAST, sLO, sHI, sONE = [f"s{i}" for i in range(44, 58)]
sT0, sT1, sT2, sT3, sW1K, sSO = [f"s{i}" for i in range(58, 64)]
SLOT = 16384
MISC = 9 * SLOT
L_STAT, L_WPHI, L_KVL = MISC, MISC + 1024, MISC + 5120
LOG2E = 1.4426950408889634
def fhex(x): return "0x%08x" % struct.unpack("<I", struct.pack("<f", x))[0]

class Regs:
    def __init__(self, lo, hi):
        self.free_ = set(range(lo, hi)); self.hw = 0
    def alloc(self, n=1, align=None):
        align = align or (1 if n == 1 else 2)
        for b in sorted(self.free_, reverse=(n >= 16)):
            if b % align == 0 and all((b + i) in self.free_ for i in range(n)):
                for i in range(n): self.free_.discard(b + i)
                self.hw = max(self.hw, b + n)
                return b
        raise RuntimeError("out of registers")
    def free(self, b, n=1):
        for i in range(n):
            assert (b + i) not in self.free_
            self.free_.add(b + i)
def vr(b, n=1): return f"v{b}" if n == 1 else f"v[{b}:{b+n-1}]"
def ar(b, n=1): return f"a{b}" if n == 1 else f"a[{b}:{b+n-1}]"

class LAddr:
    def __init__(self, k, regs): self.k, self.regs, self.base = k, regs, 0
    def off(self, absoff):
        if not (0 <= absoff - self.base < 65536):
            nb = absoff // SLOT * SLOT
            if nb > 6 * SLOT: nb = 6 * SLOT
            for r in self.regs: self.k(f"v_add_u32 v{r}, {hex((nb - self.base) & 0xffffffff)}, v{r}")
            self.base = nb
        return absoff - self.base

def gen(ts=False, force_slow=False, opt=None):
    opt = opt or {}
    k = K(); R = Regs(1, 256)
    tail = []
    stamps = []
    def stamp(name):
        if ts:
            i = len(stamps); stamps.append(name)
            k(f"s_memrealtime s[{sreg(i)}:{sreg(i)+1}]")
            if name == "hpub":
                k("s_waitcnt lgkmcnt(0)")
                for u in range(i + 1): k(f"s_mov_b32 s{88+u}, s{64+2*u}")
                nfirst.append(i + 1)
    nfirst = []
    def sreg(i): return 64 + 2 * (i - (nfirst[0] if nfirst else 0))
    def sfinal(i): return 88 + i if i < nfirst[0] else sreg(i)
    M32 = "v_mfma_f32_32x32x16_bf16"; M16 = "v_mfma_f32_16x16x32_bf16"

    def publish(stores, flag=None):
        ls, ld = k.label("slow"), k.label("back")
        k(f"s_cmp_eq_u32 {sFAST}, 1\ns_cbranch_scc0 {ls}")
        for s in stores: k.vmem(s, "pub")
        t = [f"{ls}:"] + [s + " sc1" for s in stores]
        if flag:
            k.wait(vm="all"); k.vmem(flag, "pubflag")
            t += ["s_waitcnt vmcnt(0)", flag + " sc1"]
        k(f"{ld}:")
        tail.extend(t + ["s_nop 1", f"s_branch {ld}"])
    def spin(loads, check):
        l = k.label("spin")
        k(f"s_mov_b32 {sT3}, 0\n{l}:")
        for s in loads: k(s)
        k(f"s_addk_i32 {sT3}, 1\ns_cmpk_gt_u32 {sT3}, 0x7000\ns_cbranch_scc1 L_abort")
        check()
        k(f"s_cbranch_vccnz {l}")
        k.vm.clear()
    def poll_flag(va, soff):
        t = R.alloc()
        spin([f"buffer_load_dword v{t}, v{va}, {WS}, {soff} offen sc1"],
             lambda: k(f"s_waitcnt vmcnt(0)\nv_cmp_ne_u32 vcc, {sTAG}, v{t}"))
        R.free(t)
    def dma(va, srd, soff, lds, tag):
        def f():
            k(f"s_add_u32 m0, {sW1K}, {lds}\ns_mov_b32 {sSO}, {soff}")
            k.vmem(f"buffer_load_dwordx4 v{va}, {srd}, {sSO} offen lds", tag)
        f.tag = tag
        return f
    def wchunk(va, srd, pitch, colbase, chunk, slot, tag):
        return [dma(va, srd, colbase + (chunk * 128 + 32 * a) * pitch, slot * SLOT + a * 4096, tag) for a in range(4)]
    def half_allreduce(a, b, op, mid=None):
        k(f"v_permlane32_swap_b32 v{a}, v{b}\n{op} v{a}, v{a}, v{b}")
        if mid: mid(a)
        k(f"v_mov_b32 v{b}, v{a}\nv_permlane32_swap_b32 v{a}, v{b}")
    def pk(op, d, a, b, c=None, mods=""):
        k(f"v_pk_{op}_f32 {vr(d,2)}, {vr(a,2)}, {vr(b,2)}" + (f", {vr(c,2)}" if c is not None else "") + (" " + mods if mods else ""))
    def cvt(d, s, n):
        for i in range(n): k(f"v_cvt_pk_bf16_f32 v{d+i}, v{s+2*i}, v{s+2*i+1}")
    def ln_finish(S, Q, n, baug):
        t = R.alloc()
        k(f"""v_mul_f32 v{S}, {fhex(1.0/n)}, v{S}
              v_mul_f32 v{t}, v{S}, v{S}
              v_fma_f32 v{Q}, v{Q}, {sT2}, -v{t}""")
        k(f"""v_max_f32 v{Q}, 0, v{Q}
              v_add_f32 v{Q}, {fhex(1e-5)}, v{Q}
              v_rsq_f32 v{Q}, v{Q}""")
        if baug is not None:
            k(f"""v_cvt_pk_bf16_f32 v{baug}, -v{S}, -v{S}
                  v_and_b32 v{t}, 0xffff0000, v{baug}
                  v_sub_f32 v{t}, -v{S}, v{t}
                  v_cvt_pk_bf16_f32 v{baug+1}, v{t}, 0
                  v_mov_b32 v{baug+2}, 0
                  v_mov_b32 v{baug+3}, 0""")
        R.free(t)
    def aug_a(cs0, cs1, d):
        k(f"""v_add_f32 v{cs0}, v{cs0}, v{cs1}
              v_cvt_pk_bf16_f32 v{d+1}, v{cs0}, 0
              v_lshlrev_b32 v{cs1}, 16, v{d+1}
              v_sub_f32 v{cs1}, v{cs0}, v{cs1}
              v_cvt_pk_bf16_f32 v{d}, v{cs0}, v{cs1}
              v_mov_b32 v{d+2}, 0
              v_mov_b32 v{d+3}, 0""")

    def gemm32(accs, bfrag, la, offs, sync, baug, bwait=None, bgevery=2, ahead=3):
        nt = len(accs); NB = (ahead + 1) * nt
        ring = R.alloc(4 * NB); cs = R.alloc(2 * nt)
        for i in range(2 * nt): k(f"v_mov_b32 v{cs+i}, 0")
        def rd(s):
            if s >= 32: return
            sync(s)
            for t in range(nt):
                b = ring + 4 * ((s * nt + t) % NB)
                for jh in range(2):
                    o = la.off(offs(s, jh))
                    k.ds(f"ds_read_b64_tr_b16 {vr(b+2*jh,2)}, v{la.regs[t]} offset:{o}", ("g", s, t))
        for s in range(ahead): rd(s)
        for s in range(32):
            rd(s + ahead)
            for t in range(nt):
                b = ring + 4 * ((s * nt + t) % NB)
                k.wait(lg=("g", s, t), vm=(bwait(s) if bwait and t == 0 else None))
                k(f"{M32} {vr(accs[t],16)}, {vr(b,4)}, {bfrag(s)}, {vr(accs[t],16) if s else 0}")
                for i in range(4): k(f"v_dot2c_f32_bf16 v{cs+2*t+(i&1)}, {sONE}, v{b+i}")
            if s % bgevery == 0: k.bg()
        for t in range(nt):
            aug_a(cs + 2*t, cs + 2*t + 1, ring + 4*t)
        for t in range(nt):
            k(f"{M32} {vr(accs[t],16)}, {vr(ring+4*t,4)}, {vr(baug,4)}, {vr(accs[t],16)}")
        R.free(ring, 4 * NB); R.free(cs, 2 * nt)

    def gemm16(acc, nks, bfrag, bwait, la, offs, pre, ahead=2):
        NB = (ahead + 1) * 4
        ring = R.alloc(4 * NB)
        def rd(s):
            if s >= nks: return
            for t in range(4):
                b = ring + 4 * ((s * 4 + t) % NB)
                for jh in range(2):
                    o = la.off(offs(s, jh))
                    k.ds(f"ds_read_b64_tr_b16 {vr(b+2*jh,2)}, v{la.regs[t]} offset:{o}", ("g", s, t))
        for s in range(ahead): rd(s)
        pre()
        for s in range(nks):
            for t in range(4):
                b = ring + 4 * ((s * 4 + t) % NB)
                k.wait(lg=("g", s, t), vm=(bwait(s) if t == 0 else None))
                k(f"{M16} {vr(acc+4*t,4)}, {vr(b,4)}, {bfrag(s)}, {vr(acc+4*t,4)}")
                s2 = s + ahead
                if s2 < nks:
                    b2 = ring + 4 * ((s2 * 4 + t) % NB)
                    for jh in range(2):
                        o = la.off(offs(s2, jh))
                        k.ds(f"ds_read_b64_tr_b16 {vr(b2+2*jh,2)}, v{la.regs[t]} offset:{o}", ("g", s2, t))
        R.free(ring, 4 * NB)

    if ts or opt.get("hold"): k("s_memrealtime s[100:101]")
    k(f"""s_cmp_ge_u32 s2, 256
          s_cbranch_scc1 L_end
          s_load_dwordx16 s[64:79], s[0:1], 0
          s_load_dwordx8 s[80:87], s[0:1], 64
          s_getpc_b64 s[60:61]
          s_lshr_b32 {sT0}, s2, 3
          v_and_b32 v1, 15, v0
          v_lshl_add_u32 v1, {sT0}, 4, v1
          v_lshlrev_b32 v1, 7, v1
          v_min_u32 v1, L_codeend-{NAME}_kernel-64, v1""")
    k.vmem("global_load_dword v2, v1, s[60:61]", "code")
    k(f"""v_lshrrev_b32 v1, 6, v0
          v_and_b32 v0, 63, v0
          v_readfirstlane_b32 {sW}, v1
          s_and_b32 {sX}, s2, 7
          s_lshr_b32 {sRR}, s2, 6
          s_and_b32 {sJ}, {sT0}, 7
          s_and_b32 {sC}, {sT0}, 15
          s_lshl_b32 {sG64}, {sX}, 2
          s_add_u32 {sG64}, {sG64}, {sRR}
          s_lshr_b32 {sG128}, {sG64}, 1
          s_lshr_b32 {sM}, {sW}, 1
          s_and_b32 {sN}, {sW}, 1
          s_lshl_b32 {sW1K}, {sW}, 10
          s_mov_b32 {sLO}, 0x00003f80
          s_mov_b32 {sHI}, 0x3f800000
          s_mov_b32 {sONE}, 0x3f803f80""")
    R.alloc(2, 1)
    l16 = R.alloc(); k(f"v_lshlrev_b32 v{l16}, 4, v0")
    ones = R.alloc(4)
    for i in range(4): k(f"v_mov_b32 v{ones+i}, -1")
    a_kv2p = R.alloc(); a_zsp = R.alloc(); a_kv1g = R.alloc(); a_clr = R.alloc()
    t0 = R.alloc(); t1 = R.alloc()
    k(f"""s_lshl_b32 {sT0}, {sJ}, 2
          s_add_u32 {sT0}, {sT0}, {sW}
          s_mul_i32 {sT0}, {sT0}, 9216
          s_add_u32 {sT0}, {sT0}, {KV2}
          s_lshl_b32 {sT1}, {sG64}, 8
          s_add_u32 {sT1}, {sT1}, {sT0}
          v_lshl_add_u32 v{a_kv2p}, v0, 3, {sT1}
          s_lshl_b32 {sT1}, {sX}, 7
          s_lshl_b32 {sT2}, {sRR}, 4
          s_add_u32 {sT1}, {sT1}, {sT2}
          s_add_u32 {sT1}, {sT1}, {sT0}
          s_add_u32 {sT1}, {sT1}, {8192-256}
          v_lshl_add_u32 v{t0}, v0, 3, {sT1}
          v_cmp_le_u32 vcc, 32, v0
          v_cndmask_b32 v{a_kv2p}, v{a_kv2p}, v{t0}, vcc
          v_mov_b32 v{t1}, {OOB}
          v_cmp_le_u32 vcc, 34, v0
          v_cndmask_b32 v{a_kv2p}, v{a_kv2p}, v{t1}, vcc""")
    k(f"""s_lshl_b32 {sT0}, {sX}, 3
          s_add_u32 {sT0}, {sT0}, {sJ}
          s_lshl_b32 {sT0}, {sT0}, 2
          s_add_u32 {sT0}, {sT0}, {sW}
          s_lshl_b32 {sT0}, {sT0}, 2
          s_add_u32 {sT0}, {sT0}, {sRR}
          s_mul_i32 {sT0}, {sT0}, 2176
          s_add_u32 {sT0}, {sT0}, {KV1}
          v_lshl_add_u32 v{a_kv1g}, v0, 3, {sT0}
          v_cndmask_b32 v{a_kv1g}, v{a_kv1g}, v{t1}, vcc
          v_add_u32 v{a_clr}, {sT0}, v{l16}""")
    k(f"""s_lshl_b32 {sT0}, {sG128}, 2
          s_add_u32 {sT0}, {sT0}, {sW}
          s_lshl_b32 {sT0}, {sT0}, 4
          s_add_u32 {sT0}, {sT0}, {sC}
          s_lshl_b32 {sT0}, {sT0}, 8
          s_add_u32 {sT0}, {sT0}, {ZS}
          v_and_b32 v{a_zsp}, 31, v0
          v_lshlrev_b32 v{a_zsp}, 3, v{a_zsp}
          v_lshrrev_b32 v{t0}, 5, v0
          v_lshlrev_b32 v{t0}, 2, v{t0}
          v_add3_u32 v{a_zsp}, v{a_zsp}, v{t0}, {sT0}
          v_add_u32 v{t0}, 2048, v{a_clr}
          v_cmp_le_u32 vcc, 8, v0
          v_cndmask_b32 v{t0}, v{t0}, v{t1}, vcc""")
    k("s_waitcnt lgkmcnt(0)")
    sizes = [2048*512*2, 512*1536*2, 32*256*2, 512*512*2, 512*1792*2, 2048*2048*2, 4096, 896*512*2, 2048*512*2, WS_SIZE]
    srcs = [64, 66, 68, 70, 74, 76, 78, 80, 82, 86]
    def mk(i): k(f"s_mov_b32 s{4+4*i}, s{srcs[i]}\ns_mov_b32 s{5+4*i}, s{srcs[i]+1}\ns_mov_b32 s{6+4*i}, {sizes[i]}\ns_mov_b32 s{7+4*i}, 0x20000")
    mk(9); mk(0)
    k(f"s_load_dword {sTAG}, s[86:87], {EPOCH}")
    k.vmem(f"buffer_store_dwordx4 {vr(ones,4)}, v{a_clr}, {WS}, 0 offen sc1", "clr")
    k.vmem(f"buffer_store_dwordx4 {vr(ones,4)}, v{a_clr}, {WS}, 0 offen offset:1024 sc1", "clr")
    k.vmem(f"buffer_store_dwordx4 {vr(ones,4)}, v{t0}, {WS}, 0 offen sc1", "clr")
    k.vmem(f"buffer_store_dwordx2 {vr(ones,2)}, v{a_kv2p}, {WS}, 0 offen sc1", "clr")
    k.vmem(f"buffer_store_dword v{ones}, v{a_zsp}, {WS}, 0 offen sc1", "clr")
    k(f"""s_lshl_b32 {sT0}, {sG64}, 16
          s_lshl_b32 {sT1}, {sW}, 14
          s_add_u32 {sT0}, {sT0}, {sT1}
          s_lshl_b32 {sT2}, {sJ}, 1""")
    for t in range(16):
        k(f"""s_lshl_b32 {sT3}, {sT2}, 4
              v_xor_b32 v{t1}, {sT3}, v{l16}
              s_lshl_b32 {sT3}, {sT2}, 10
              s_add_u32 m0, {sT3}, {sT1}
              s_add_u32 {sSO}, {sT3}, {sT0}""")
        k.vmem(f"buffer_load_dwordx4 v{t1}, {X}, {sSO} offen lds", "x")
        if t < 15: k(f"s_add_u32 {sT2}, {sT2}, 1\ns_and_b32 {sT2}, {sT2}, 15")
        if t == 3:
            for i in (1, 2, 3, 4, 5, 6, 7, 8): mk(i)
            k(f"s_cmp_lt_u32 {sC}, 14\ns_cselect_b32 s22, s22, 0")
    stamp("start")
    k(f"""s_lshl_b32 {sT0}, {sJ}, 1
          s_add_u32 {sT0}, {sT0}, {sN}
          s_lshl_b32 {sT0}, {sT0}, 10
          s_add_u32 m0, {sW1K}, {L_WPHI}
          s_nop 0""")
    k.vmem(f"buffer_load_dwordx4 v{l16}, {WPHI}, {sT0} offen lds", "wphi")
    a_wq = R.alloc(); a_w1k = R.alloc(); a_win = R.alloc()
    k(f"""v_lshrrev_b32 v{t0}, 3, v0
          v_lshl_add_u32 v{t0}, {sW}, 3, v{t0}
          v_lshrrev_b32 v{t1}, 2, v0
          v_and_b32 v{t1}, 4, v{t1}
          v_and_b32 v1, 7, v0
          v_xor_b32 v{t1}, v{t1}, v1
          v_lshlrev_b32 v{t1}, 4, v{t1}
          s_lshl_b32 {sT0}, {sJ}, 7
          s_lshl_b32 {sT1}, {sC}, 7
          s_lshl_b32 {sT2}, {sN}, 5
          v_mul_u32_u24 v1, 3072, v{t0}
          v_add3_u32 v{a_wq}, v1, v{t1}, {sT0}
          v_mul_u32_u24 v1, 3584, v{t0}
          v_add3_u32 v{a_win}, v1, v{t1}, {sT1}
          v_xor_b32 v{t1}, {sT2}, v{t1}
          v_lshlrev_b32 v1, 10, v{t0}
          v_add3_u32 v{a_w1k}, v1, v{t1}, {sT0}""")
    sl_k, sl_v, sl_q, sl_o = [4,5,6,7], [8,0,1,2], [3,4,5,6], [7,8,0,1]
    sl_z2, sl_z1 = [2,3,4,5], [6,7,8,0]
    J = lambda va, srd, pitch, cb, sl, nm, cs: sum([wchunk(va, srd, pitch, cb, c, sl[c], (nm, c)) for c in cs], [])
    k.bgq += J(a_wq, WQKV, 3072, 1024, sl_k, "wk", range(4)) + J(a_wq, WQKV, 3072, 2048, sl_v, "wv", [0])
    k.bg(4)
    for i in range(4): k(f"v_mov_b32 v{ones+i}, {sONE}")
    sel = R.alloc(8)
    k(f"""v_lshrrev_b32 v{t0}, 3, v0
          v_xor_b32 v{t0}, v{t0}, v0
          v_and_b32 v{t0}, 4, v{t0}
          v_lshlrev_b32 v{t0}, 2, v{t0}
          v_bfe_u32 v{t1}, v0, 1, 1
          v_or_b32 v{t0}, v{t0}, v{t1}
          v_bfe_u32 v{t1}, v0, 3, 2
          v_lshl_or_b32 v{t0}, v{t1}, 1, v{t0}
          v_and_b32 v{t1}, 1, v0
          v_lshlrev_b32 v{t1}, 4, v{t1}
          v_lshlrev_b32 v{t1}, v{t1}, {sLO}""")
    for i in range(8):
        k(f"v_cmp_eq_u32 vcc, {i}, v{t0}\nv_cndmask_b32 v{sel+i}, 0, v{t1}, vcc")
    t_s1 = R.alloc(); t_s4 = R.alloc(2, 1); t_16 = R.alloc(4, 1); t_ph = R.alloc()
    k(f"""v_bfe_u32 v{t0}, v0, 2, 2
          v_lshlrev_b32 v{t0}, 7, v{t0}
          v_bfe_u32 v{t1}, v0, 3, 1
          v_lshl_or_b32 v{t0}, v{t1}, 6, v{t0}
          v_bfe_u32 v{t1}, v0, 4, 1
          v_lshl_or_b32 v{t0}, v{t1}, 5, v{t0}
          v_and_b32 v{t1}, 3, v0
          v_lshl_or_b32 v{t_16}, v{t1}, 3, v{t0}
          v_lshrrev_b32 v{t1}, 4, v0
          v_lshl_add_u32 v{t_16}, v{t1}, 10, v{t_16}
          v_xor_b32 v{t_16+1}, 32, v{t_16}
          v_xor_b32 v{t_16+2}, 64, v{t_16}
          v_xor_b32 v{t_16+3}, 0x60, v{t_16}
          v_and_b32 v{t1}, 1, v0
          v_lshl_or_b32 v{t0}, v{t1}, 4, v{t0}
          v_bfe_u32 v{t1}, v0, 1, 1
          v_lshl_or_b32 v{t0}, v{t1}, 3, v{t0}
          v_lshrrev_b32 v{t1}, 5, v0
          v_lshl_add_u32 v{t_s4}, v{t1}, 9, v{t0}
          v_xor_b32 v{t_s4+1}, 64, v{t_s4}
          v_lshl_add_u32 v{t_s1}, v{t1}, 10, v{t0}
          s_lshl_b32 {sT0}, {sN}, 6
          v_xor_b32 v{t_s1}, {sT0}, v{t_s1}""")
    k(f"""v_and_b32 v{t_ph}, 15, v0
          v_lshlrev_b32 v{t_ph}, 3, v{t_ph}
          v_lshl_add_u32 v{t_ph}, v{t1}, 8, v{t_ph}
          v_bfe_u32 v{t1}, v0, 4, 1
          v_lshl_add_u32 v{t_ph}, v{t1}, 9, v{t_ph}
          s_add_u32 {sT0}, {sW1K}, {L_WPHI}
          v_add_u32 v{t_ph}, {sT0}, v{t_ph}""")
    k.bg(4)
    xa = R.alloc(8, 1)
    k(f"""v_and_b32 v{t0}, 15, v0
          v_lshrrev_b32 v{t1}, 4, v0
          v_xor_b32 v1, v{t0}, v{t1}
          v_lshlrev_b32 v1, 4, v1
          v_lshl_add_u32 v1, v{t0}, 10, v1
          s_lshl_b32 {sT0}, {sW}, 14
          v_add_u32 v{xa}, {sT0}, v1
          v_xor_b32 v{xa+1}, 64, v{xa}
          v_xor_b32 v{xa+2}, 0x80, v{xa}
          v_xor_b32 v{xa+3}, 0xc0, v{xa}
          v_lshrrev_b32 v1, 5, v0
          v_lshl_add_u32 v1, {sJ}, 3, v1
          v_xor_b32 v1, v1, v{t0}
          v_lshlrev_b32 v1, 4, v1
          v_lshl_add_u32 v1, v{t0}, 10, v1
          v_and_b32 v{t1}, 1, v{t1}
          v_lshl_add_u32 v1, v{t1}, 3, v1
          v_add_u32 v{xa+4}, {sT0}, v1
          v_xor_b32 v{xa+5}, 32, v{xa+4}
          v_xor_b32 v{xa+6}, 64, v{xa+4}
          v_xor_b32 v{xa+7}, 0x60, v{xa+4}""")
    xs = R.alloc(64); xres = R.alloc(8); st = R.alloc(4)
    for i in range(4): k(f"v_mov_b32 v{st+i}, 0")
    k("s_waitcnt lgkmcnt(0)")
    k(f"s_add_u32 {sTAG}, {sTAG}, 1")
    k.wait(vm="x")
    stamp("x")
    k("s_barrier")
    hv = R.alloc(2)
    lh = k.label("nohello")
    k(f"""s_getreg_b32 {sT0}, hwreg(HW_REG_XCC_ID)
          s_and_b32 {sT0}, {sT0}, 7
          s_xor_b32 {sFAST}, {sTAG}, 0x5bd1e995
          s_andn2_b32 {sFAST}, {sFAST}, 7
          s_or_b32 {sFAST}, {sFAST}, {sT0}
          s_lshl_b32 {sT0}, {sJ}, 3
          s_add_u32 {sT0}, {sT0}, {sX}
          s_lshl_b32 {sT0}, {sT0}, 4
          s_add_u32 {sT0}, {sT0}, {sRR}
          s_lshl_b32 {sT0}, {sT0}, 3
          s_add_u32 {sT0}, {sT0}, {HELLO}
          s_cmp_eq_u32 {sW}, 0
          s_cselect_b32 {sT0}, {sT0}, {OOB}
          v_mov_b32 v{hv}, {sTAG}
          v_mov_b32 v{hv+1}, {sFAST}
          v_mov_b32 v1, {sT0}
          s_mov_b64 exec, 1""")
    k.vmem(f"buffer_store_dwordx2 {vr(hv,2)}, v1, {WS}, 0 offen sc1", "hello")
    k("s_mov_b64 exec, -1")
    for u in range(16):
        k.ds(f"ds_read_b128 {vr(xs+4*u,4)}, v{xa+(u&3)} offset:{(u>>2)*256}", ("xs", u))
    for T in range(4):
        k.ds(f"ds_read_b64 {vr(xres+2*T,2)}, v{xa+4+T}", "xres")
    k(f"""v_and_b32 v{t0}, 15, v0
          v_lshrrev_b32 v{t1}, 5, v0
          v_xor_b32 v{t0}, v{t0}, v{t1}
          v_lshlrev_b32 v{t0}, 4, v{t0}
          v_and_b32 v{t1}, 31, v0
          v_lshl_add_u32 v{t0}, v{t1}, 10, v{t0}
          s_lshl_b32 {sT0}, {sM}, 15
          v_add_u32 v{xa}, {sT0}, v{t0}""")
    for i in range(1, 8): k(f"v_xor_b32 v{xa+i}, {hex(32*i)}, v{xa}")
    for u in range(16):
        k.wait(lg=("xs", u))
        for i in range(4):
            k(f"v_dot2c_f32_bf16 v{st+(i&1)}, {sONE}, v{xs+4*u+i}\nv_dot2c_f32_bf16 v{st+2+(i&1)}, v{xs+4*u+i}, v{xs+4*u+i}")
        for s in (2*u, 2*u+1):
            k.ds(f"ds_read_b128 {ar(4*s,4)}, v{xa+(s&7)} offset:{(s>>3)*256}", "xf")
        if u % 2 == 0: k.bg()
    def quad_reduce(S, Q):
        k(f"""v_permlane32_swap_b32 v{S}, v{Q}
              v_add_f32 v{S}, v{S}, v{Q}
              v_mov_b32 v{Q}, v{S}
              v_permlane16_swap_b32 v{S}, v{Q}
              v_add_f32 v{S}, v{S}, v{Q}""")
    k(f"""v_add_f32 v{st}, v{st}, v{st+1}
          v_add_f32 v{st+2}, v{st+2}, v{st+3}""")
    quad_reduce(st, st + 2)
    k(f"""v_and_b32 v{t0}, 15, v0
          v_lshl_add_u32 v{t0}, {sW}, 4, v{t0}
          v_lshrrev_b32 v{t1}, 5, v0
          v_lshl_add_u32 v{t0}, v{t0}, 1, v{t1}
          v_lshlrev_b32 v{t0}, 2, v{t0}
          v_add_u32 v{t0}, {L_STAT}, v{t0}""")
    k.ds(f"ds_write_b32 v{t0}, v{st}", "stw")
    R.free(xs, 64); R.free(xa, 8)
    wph = R.alloc(8)
    k.wait(vm="wphi")
    for jh in range(2): k.ds(f"ds_read_b64_tr_b16 {vr(wph+2*jh,2)}, v{t_ph} offset:{jh*128}", "wph")
    k(f"""v_and_b32 v{t0}, 31, v0
          v_lshl_add_u32 v{t0}, {sM}, 5, v{t0}
          v_lshlrev_b32 v{t0}, 3, v{t0}
          v_add_u32 v{t0}, {L_STAT}, v{t0}
          v_and_b32 v{t1}, 16, v0
          v_cmp_ne_u32 vcc, 0, v{t1}""")
    k.wait(lg="all", vm=("wk", 0))
    k("s_barrier")
    R.free(t_ph)
    k.bgq += J(a_wq, WQKV, 3072, 2048, sl_v, "wv", [1, 2, 3]) + J(a_wq, WQKV, 3072, 0, sl_q, "wq", [0])
    k.ds(f"ds_read_b64 {vr(st,2)}, v{t0}", "st")
    for i in range(4):
        k(f"v_cndmask_b32 v{wph+4+i}, 0, v{wph+i}, vcc\nv_cndmask_b32 v{wph+i}, v{wph+i}, 0, vcc")
    baug = R.alloc(4)
    k(f"s_mov_b32 {sT2}, {fhex(1.0/512)}")
    k.wait(lg="st")
    ln_finish(st, st + 1, 512, baug)
    rstd = st + 1; sc = st + 2
    k(f"v_mul_f32 v{sc}, {fhex(LOG2E)}, v{rstd}")
    k(f"v_mov_b32 v{st}, v{rstd}")
    la1 = LAddr(k, [t_s1])
    def offs1(sl): return lambda s, jh: sl[s >> 3] * SLOT + (s & 7) * 2048 + jh * 512
    def chunk_sync(nm, first=True):
        def f(s):
            if s % 8 == 0 and (s or first):
                k.wait(vm=(nm, s >> 3)); k("s_barrier")
        return f
    def whole_sync(nm):
        def f(s):
            if s == 0:
                k.wait(vm=(nm, 3)); k("s_barrier")
        return f
    xf = lambda s: ar(4 * s, 4)
    acc = R.alloc(16)

    def phi(acc, ph):
        kb = R.alloc(8); P = R.alloc(16); E = R.alloc(32); mm = R.alloc(8)
        cvt(kb, acc, 8)
        k(f"{M32} {vr(P,16)}, {vr(wph,4)}, {vr(kb,4)}, 0")
        k(f"{M32} {vr(P,16)}, {vr(wph+4,4)}, {vr(kb+4,4)}, {vr(P,16)}")
        k.bg(2)
        for o, (op3, op2) in enumerate((("v_max3_f32", "v_max_f32"), ("v_min3_f32", "v_min_f32"))):
            for e in range(2):
                p = P + 8*e; d = mm + 2*o + e; t = mm + 4 + e
                k(f"""{op3} v{d}, v{p}, v{p+1}, v{p+2}
                      {op3} v{t}, v{p+3}, v{p+4}, v{p+5}
                      {op3} v{d}, v{p+6}, v{p+7}, v{d}
                      {op2} v{d}, v{d}, v{t}""")
        half_allreduce(mm, mm + 1, "v_max_f32")
        half_allreduce(mm + 2, mm + 3, "v_min_f32")
        pk("mul", mm, mm, sc, mods="op_sel_hi:[1,0]")
        pk("mul", mm + 2, mm + 2, sc, mods="op_sel_hi:[1,0]")
        k.bg()
        for e in range(2):
            for i in range(0, 8, 2):
                pk("fma", E + 16*e + i, P + 8*e + i, sc, mm, f"op_sel:[0,0,{e}] op_sel_hi:[1,0,{e}] neg_lo:[0,0,1] neg_hi:[0,0,1]")
                pk("fma", E + 16*e + 8 + i, P + 8*e + i, sc, mm + 2, f"op_sel:[0,0,{e}] op_sel_hi:[1,0,{e}] neg_lo:[1,0,0] neg_hi:[1,0,0]")
        for i in range(32):
            k(f"v_exp_f32 v{E+i}, v{E+i}")
            if i % 8 == 0: k.bg()
        for q in range(4):
            b = E + 8*q
            pk("add", P, b, b + 2); pk("add", P + 2, b + 4, b + 6); pk("add", P, P, P + 2)
            k(f"v_add_f32 v{mm+q}, v{P}, v{P+1}")
        k.bg()
        rc = lambda a: k(f"v_rcp_f32 v{a}, v{a}")
        half_allreduce(mm, mm + 1, "v_add_f32", rc)
        half_allreduce(mm + 2, mm + 3, "v_add_f32", rc)
        for q in range(4):
            for i in range(0, 8, 2):
                pk("mul", E + 8*q + i, E + 8*q + i, mm + (q & 2), mods=f"op_sel:[0,{q&1}] op_sel_hi:[1,{q&1}]")
            cvt(ph + 4*q, E + 8*q, 4)
            k.bg()
        R.free(kb, 8); R.free(P, 16); R.free(E, 32); R.free(mm, 8)

    gemm32([acc], xf, la1, offs1(sl_k), chunk_sync("wk", False), baug)
    stamp("kgemm")
    k("s_barrier")
    k.bgq += J(a_wq, WQKV, 3072, 0, sl_q, "wq", [1, 2, 3]) + J(a_w1k, WO, 1024, 0, sl_o, "wo", [0])
    a_hl = R.alloc()
    k(f"""v_bfe_u32 v{t0}, v0, 2, 3
          v_lshlrev_b32 v{t1}, 3, v{t0}
          v_add_u32 v{t1}, {sX}, v{t1}
          v_lshl_add_u32 v{t0}, {sJ}, 3, v{t0}
          v_cmp_le_u32 vcc, 32, v0
          v_cndmask_b32 v{t0}, v{t1}, v{t0}, vcc
          v_and_b32 v{t1}, 3, v0
          v_lshl_add_u32 v{t0}, v{t0}, 4, v{t1}
          v_lshlrev_b32 v{t0}, 3, v{t0}
          v_add_u32 v{a_hl}, {HELLO}, v{t0}""")
    ph = R.alloc(16)
    phi(acc, ph)
    pt = R.alloc(16); T0 = R.alloc(16); T1 = R.alloc(16)
    for e, T in enumerate((T0, T1)):
        k(f"{M32} {vr(T,16)}, {vr(ph+8*e,4)}, {vr(sel,4)}, 0")
        k(f"{M32} {vr(T,16)}, {vr(ph+8*e+4,4)}, {vr(sel+4,4)}, {vr(T,16)}")
    k.vmem(f"buffer_load_dwordx2 {vr(hv,2)}, v{a_hl}, {WS}, 0 offen sc1", "hl")
    k(f"v_sub_u32 v{a_clr}, v{a_clr}, v{l16}\nv_min_u32 v{t0}, 16, v0\nv_lshl_add_u32 v{a_clr}, v{t0}, 7, v{a_clr}")
    k.vmem(f"buffer_load_dword v2, v{a_clr}, {WS}, 0 offen sc1", "touch")
    cvt(pt, T0, 8); cvt(pt + 8, T1, 8)
    for T in (T0, T1): k(f"{M32} {vr(T,16)}, {vr(ones,4)}, {vr(sel+4,4)}, 0")
    stamp("phik")
    gemm32([acc], xf, la1, offs1(sl_v), whole_sync("wv"), baug, bgevery=4)
    vb = R.alloc(16)
    for i in range(0, 16, 2): pk("mul", acc + i, acc + i, st)
    cvt(vb, acc, 8)
    for e, T in enumerate((T0, T1)):
        k(f"{M32} {vr(T,16)}, {vr(vb+4*e,4)}, {vr(sel,4)}, {vr(T,16)}")
    def hello_chk():
        k(f"""v_xor_b32 v{hv+1}, {sFAST}, v{hv+1}
              v_lshrrev_b32 v{t0}, 3, v{hv+1}
              v_xor_b32 v{hv}, {sTAG}, v{hv}
              v_or_b32 v{t0}, v{t0}, v{hv}
              v_cmp_ne_u32 vcc, 0, v{t0}""")
    lok = k.label("hello_ok")
    k.wait(vm="hl"); hello_chk(); k(f"s_cbranch_vccz {lok}")
    keep = list(k.vm)
    spin([f"buffer_load_dwordx2 {vr(hv,2)}, v{a_hl}, {WS}, 0 offen sc1"], lambda: (k("s_waitcnt vmcnt(0)"), hello_chk()))
    k.vm = keep
    k(f"""{lok}:
          v_cmp_ne_u32 vcc, 0, v{hv+1}
          s_nop 1
          s_cmp_eq_u32 vcc_lo, 0
          s_cselect_b32 {sFAST}, {0 if force_slow else 1}, 0""")
    R.free(a_hl); R.free(hv, 2)
    a_p = R.alloc()
    k(f"""s_lshl_b32 {sT0}, {sX}, 3
          s_add_u32 {sT0}, {sT0}, {sJ}
          s_lshl_b32 {sT0}, {sT0}, 1
          s_add_u32 {sT0}, {sT0}, {sN}
          s_mul_i32 {sT0}, {sT0}, {2*8704}
          s_lshl_b32 {sT1}, {sRR}, 1
          s_add_u32 {sT1}, {sT1}, {sM}
          s_mul_i32 {sT1}, {sT1}, 272
          s_add_u32 {sT0}, {sT0}, {sT1}
          s_add_u32 {sT0}, {sT0}, {KV1}
          v_lshrrev_b32 v{t0}, 5, v0
          v_mul_u32_u24 v{t0}, 2176, v{t0}
          v_and_b32 v{t1}, 31, v0
          v_cmp_lt_u32 vcc, 16, v{t1}
          v_lshlrev_b32 v{t1}, 4, v{t1}
          v_add3_u32 v{a_p}, v{t0}, v{t1}, {sT0}
          v_mov_b32 v{t1}, {OOB}
          v_cndmask_b32 v{a_p}, v{a_p}, v{t1}, vcc
          s_movk_i32 {sT0}, 4352
          s_movk_i32 {sT1}, 8704
          s_movk_i32 {sT2}, {8704+4352}""")
    cvt(vb, T0, 8); cvt(vb + 8, T1, 8)
    for ks in range(2):
        for e, T in enumerate((T0, T1)):
            k(f"{M32} {vr(T,16)}, {vr(pt+8*e+4*ks,4)}, {vr(vb+8*e+4*ks,4)}, {vr(T,16) if ks else 0}")
    cvt(pt, T0, 8); cvt(pt + 8, T1, 8)
    publish([f"buffer_store_dwordx4 {vr(pt+4*q,4)}, v{a_p}, {WS}, {so} offen" for q, so in enumerate(("0", sT0, sT1, sT2))])
    stamp("kvpub")
    R.free(a_p); R.free(vb, 16)
    g1 = T0
    def chk1():
        k("s_waitcnt vmcnt(0)")
        k(f"v_max3_u32 v{t0}, v{g1}, v{g1+2}, v{g1+4}\nv_max3_u32 v{t1}, v{g1+6}, v{g1+8}, v{g1+10}")
        k(f"v_max3_u32 v{t0}, v{g1+12}, v{g1+14}, v{t0}\nv_max_u32 v{t0}, v{t0}, v{t1}\nv_cmp_eq_u32 vcc, -1, v{t0}")
    for i in range(4): k(f"v_mov_b32 v{T1+i}, 0")
    spin([f"buffer_load_dwordx2 {vr(g1+2*s,2)}, v{a_kv1g}, {WS}, 0 offen offset:{272*s} sc1" for s in range(8)], chk1)
    for s in range(8):
        for i in range(4): k(f"v_dot2c_f32_bf16 v{T1+i}, {sHI if i&1 else sLO}, v{g1+2*s+(i>>1)}")
    cvt(T1 + 4, T1, 2)
    k.vmem(f"buffer_store_dwordx2 {vr(T1+4,2)}, v{a_kv2p}, {WS}, 0 offen sc1", "kv2")
    stamp("a1")
    R.free(a_kv1g); R.free(a_clr); R.free(a_kv2p); R.free(pt, 16)
    k.bg_all()
    def qsync(s):
        if s == 0:
            k.wait(vm=("wq", 3)); k("s_barrier")
            k.bgq += J(a_w1k, WO, 1024, 0, sl_o, "wo", [1, 2, 3]) + J(a_win, WIN, 3584, 1792, sl_z2, "wz2", [0])
    gemm32([acc], xf, la1, offs1(sl_q), qsync, baug)
    k.bg_all()
    phi(acc, ph)
    R.free(t_s1); R.free(a_wq); R.free(baug, 4); R.free(wph, 8); R.free(st, 4)
    stamp("phiq")
    a_op = R.alloc(); a_fbp = R.alloc(); a_fl = R.alloc(); a_hp = R.alloc(); a_hsp = R.alloc(); a_z = R.alloc(); a_kw = R.alloc(2, 1); a_kr = R.alloc()
    k(f"""s_lshl_b32 {sT0}, {sG64}, 1
          s_add_u32 {sT0}, {sT0}, {sM}
          s_lshl_b32 {sT1}, {sJ}, 1
          s_add_u32 {sT1}, {sT1}, {sN}
          s_lshl_b32 {sT2}, {sT0}, 5
          s_add_u32 {sT2}, {sT2}, {sT1}
          s_lshl_b32 {sT3}, {sT2}, 10
          s_add_u32 {sT3}, {sT3}, {OB}
          v_bfe_u32 v{t0}, v0, 4, 1
          v_lshlrev_b32 v{t0}, 14, v{t0}
          v_lshrrev_b32 v{t1}, 5, v0
          v_lshl_or_b32 v{t0}, v{t1}, 8, v{t0}
          v_and_b32 v1, 15, v0
          v_lshlrev_b32 v{t1}, 4, v1
          v_add3_u32 v{a_op}, v{t0}, v{t1}, {sT3}
          s_lshl_b32 {sT2}, {sT2}, 2
          v_mov_b32 v{a_fbp}, {sT2}
          s_lshl_b32 {sT0}, {sT0}, 7
          v_lshl_add_u32 v{a_fl}, v1, 2, {sT0}""")
    k(f"""s_lshl_b32 {sT1}, {sT0}, 8
          s_lshl_b32 {sT2}, {sJ}, 12
          s_add_u32 {sT1}, {sT1}, {sT2}
          s_lshl_b32 {sT2}, {sN}, 8
          s_add_u32 {sT1}, {sT1}, {sT2}
          s_add_u32 {sT1}, {sT1}, {HB}
          v_lshrrev_b32 v{t0}, 4, v0
          v_lshlrev_b32 v{t0}, 9, v{t0}
          v_add3_u32 v{a_hp}, v{t0}, v{t1}, {sT1}""")
    k(f"""s_lshl_b32 {sT1}, {sT0}, 4
          s_lshl_b32 {sT2}, {sJ}, 8
          s_add_u32 {sT1}, {sT1}, {sT2}
          s_lshl_b32 {sT2}, {sN}, 7
          s_add_u32 {sT1}, {sT1}, {sT2}
          s_add_u32 {sT1}, {sT1}, {HS}
          v_lshrrev_b32 v{t0}, 5, v0
          v_lshl_add_u32 v{t0}, v1, 1, v{t0}
          v_lshl_add_u32 v{a_hsp}, v{t0}, 2, {sT1}
          v_and_b32 v{t0}, 16, v0
          v_cmp_ne_u32 vcc, 0, v{t0}
          v_mov_b32 v{t0}, {OOB}
          v_cndmask_b32 v{a_hsp}, v{a_hsp}, v{t0}, vcc""")
    k(f"""v_lshrrev_b32 v{t0}, 4, v0
          v_lshlrev_b32 v{a_z}, 7, v{t0}
          v_lshl_add_u32 v{a_z}, v1, 2, v{a_z}
          s_mul_i32 {sT1}, {sW}, 1088
          s_add_u32 {sT1}, {sT1}, {L_KVL}
          v_mul_u32_u24 v{t0}, 272, v{t0}
          v_add3_u32 v{a_kw}, v{t0}, v{t1}, {sT1}
          v_bfe_u32 v{t0}, v0, 2, 2
          v_mul_u32_u24 v{t0}, 272, v{t0}
          v_and_b32 v{t1}, 3, v0
          v_lshl_add_u32 v{t0}, v{t1}, 2, v{t0}
          v_lshrrev_b32 v{t1}, 5, v0
          v_lshlrev_b32 v1, 1, v{t1}
          v_add3_u32 v{a_kw+1}, v{t0}, v1, {sT1}
          v_mul_u32_u24 v{t1}, 272, v{t1}
          v_and_b32 v{t0}, 31, v0
          v_min_u32 v{t0}, 16, v{t0}
          v_lshlrev_b32 v{t0}, 4, v{t0}
          s_mul_i32 {sT1}, {sN}, 2176
          s_add_u32 {sT1}, {sT1}, {L_KVL}
          v_add3_u32 v{a_kr}, v{t0}, v{t1}, {sT1}
          s_lshl_b32 {sT0}, {sJ}, 2
          s_add_u32 {sT0}, {sT0}, {sW}
          s_mul_i32 {sT0}, {sT0}, 9216
          s_add_u32 {sT0}, {sT0}, {KV2}
          s_add_u32 {sT1}, {sT0}, 4096
          s_add_u32 {sT2}, {sT0}, 8192""")
    for o in (0, 512): k.vmem(f"buffer_load_dword v2, v{a_op}, {WS}, 0 offen offset:{o} sc1", "touch")
    for o in (0, 2048): k.vmem(f"buffer_load_dword v2, v{a_hp}, {WS}, 0 offen offset:{o} sc1", "touch")
    k.vmem(f"buffer_load_dword v2, v{a_hsp}, {WS}, 0 offen sc1", "touch")
    k.vmem(f"buffer_load_dword v2, v{a_zsp}, {WS}, 0 offen sc1", "touch")
    k(f"v_lshrrev_b32 v{t0}, 4, v0\nv_min_u32 v{t0}, 2, v{t0}\nv_lshl_add_u32 v{t0}, v{t0}, 13, v{a_fl}\ns_movk_i32 {sSO}, {FB}")
    k.vmem(f"buffer_load_dword v2, v{t0}, {WS}, {sSO} offen sc1", "touch")
    g2 = R.alloc(32); gz = R.alloc(4); sm = R.alloc(10)
    def chk2():
        for xx in range(8):
            k(f"s_waitcnt vmcnt({9-xx})")
            k(f"v_max3_u32 v{t0}, v{g2+4*xx}, v{g2+4*xx+2}, v{t0}" if xx else f"v_max_u32 v{t0}, v{g2}, v{g2+2}")
        k(f"s_waitcnt vmcnt(0)\nv_max3_u32 v{t0}, v{gz}, v{gz+1}, v{t0}\nv_cmp_eq_u32 vcc, -1, v{t0}")
    for i in range(10): k(f"v_mov_b32 v{sm+i}, 0")
    spin([f"buffer_load_dwordx4 {vr(g2+4*xx,4)}, v{l16}, {WS}, {sT1 if xx>>2 else sT0} offen offset:{1024*(xx&3)} sc1" for xx in range(8)]
         + [f"buffer_load_dword v{gz+u}, v{a_z}, {WS}, {sT2} offen offset:{512*u} sc1" for u in range(2)], chk2)
    stamp("a2")
    for u in range(2):
        k(f"v_dot2c_f32_bf16 v{sm+8}, {sLO}, v{gz+u}\nv_dot2c_f32_bf16 v{sm+9}, {sHI}, v{gz+u}")
    for xx in range(8):
        for i in range(8): k(f"v_dot2c_f32_bf16 v{sm+i}, {sHI if i&1 else sLO}, v{g2+4*xx+(i>>1)}")
    quad_reduce(sm + 8, sm + 9)
    cvt(gz, sm, 4)
    k.ds(f"ds_write_b128 v{a_kw}, {vr(gz,4)}", "kw")
    k(f"v_cvt_pk_bf16_f32 v{sm+8}, v{sm+8}, v{sm+8}")
    k.ds(f"ds_write_b16 v{a_kw+1}, v{sm+8} offset:256", "kw")
    k.wait(lg="all"); k("s_barrier")
    for q in range(4):
        k.ds(f"ds_read_b128 {vr(g2+4*q,4)}, v{a_kr} offset:{(q>>1)*1088+(q&1)*544}", ("kr", q))
    for e, T in enumerate((T0, T1)):
        k.wait(lg=("kr", 2*e)); k(f"{M32} {vr(T,16)}, {vr(g2+8*e,4)}, {vr(ph+8*e,4)}, 0")
        k.wait(lg=("kr", 2*e+1)); k(f"{M32} {vr(T,16)}, {vr(g2+8*e+4,4)}, {vr(ph+8*e+4,4)}, {vr(T,16)}")
    tagv = R.alloc(); k(f"v_mov_b32 v{tagv}, {sTAG}")
    for i in range(8):
        k(f"v_lshlrev_b32 v{acc+2*i}, 16, v{xres+i}\nv_and_b32 v{acc+2*i+1}, 0xffff0000, v{xres+i}")
    for T in (T0, T1): k(f"v_add_f32 v{T+8}, {fhex(1e-6)}, v{T+8}")
    for T in (T0, T1): k(f"v_rcp_f32 v{T+8}, v{T+8}")
    for e, T in enumerate((T0, T1)):
        for i in range(0, 8, 2): pk("mul", T + i, T + i, T + 8, mods="op_sel_hi:[1,0]")
        cvt(g2 + 4*e, T, 4)
    k(f"s_movk_i32 {sT0}, {FB}")
    publish([f"buffer_store_dwordx4 {vr(g2+4*e,4)}, v{a_op}, {WS}, 0 offen offset:{512*e}" for e in range(2)],
            f"buffer_store_dword v{tagv}, v{a_fbp}, {WS}, {sT0} offen")
    stamp("opub")
    R.free(g2, 32); R.free(gz, 4); R.free(sm, 10); R.free(T0, 16); R.free(T1, 16); R.free(ph, 16)
    R.free(a_op); R.free(a_z); R.free(a_kw, 2); R.free(a_kr)
    k("s_barrier")
    of = R.alloc(64)
    la16 = LAddr(k, [t_16 + i for i in range(4)])
    def pre3():
        poll_flag(a_fl, sT0)
        stamp("b")
        k(f"""s_lshl_b32 {sT0}, {sG64}, 2
              s_add_u32 {sT0}, {sT0}, {sW}
              s_lshl_b32 {sT0}, {sT0}, 14
              s_add_u32 {sT0}, {sT0}, {OB}""")
        for s in range(16):
            if s and s % 4 == 0: k(f"s_add_u32 {sT0}, {sT0}, 4096")
            k.vmem(f"buffer_load_dwordx4 {vr(of+4*s,4)}, v{l16}, {WS}, {sT0} offen offset:{1024*(s&3)} sc1", ("o", s))
        k.bgq += J(a_win, WIN, 3584, 1792, sl_z2, "wz2", [1, 2, 3]) + J(a_win, WIN, 3584, 0, sl_z1, "wz1", [0])
        k.bg(opt.get("bg3", 0))
    gemm16(acc, 16, lambda s: vr(of+4*s, 4), lambda s: ("o", s), la16,
           lambda s, jh: sl_o[s >> 2] * SLOT + (s & 3) * 4096 + jh * 512, pre3)
    R.free(of, 64)
    hk = xres
    cvt(hk, acc, 8)
    st = R.alloc(4)
    for i in range(4): k(f"v_mov_b32 v{st+i}, 0")
    for i in range(8):
        k(f"v_dot2c_f32_bf16 v{st+(i&1)}, {sONE}, v{hk+i}\nv_dot2c_f32_bf16 v{st+2+(i&1)}, v{hk+i}, v{hk+i}")
    k(f"v_add_f32 v{st}, v{st}, v{st+1}\nv_add_f32 v{st+2}, v{st+2}, v{st+3}")
    quad_reduce(st, st + 2)
    k(f"s_movk_i32 {sT0}, {FC}")
    publish([f"buffer_store_dwordx4 {vr(hk+4*p,4)}, v{a_hp}, {WS}, 0 offen offset:{2048*p}" for p in range(2)]
            + [f"buffer_store_dword v{st}, v{a_hsp}, {WS}, 0 offen"],
            f"buffer_store_dword v{tagv}, v{a_fbp}, {WS}, {sT0} offen")
    stamp("hpub")
    R.free(a_hp); R.free(a_hsp); R.free(a_fbp); R.free(acc, 16)
    k(f"""s_or_b32 {sT1}, s2, {sW}
          s_cmp_eq_u32 {sT1}, 0
          s_cselect_b32 {sT1}, {EPOCH}, {OOB}
          v_mov_b32 v1, {sT1}""")
    k.vmem(f"buffer_store_dword v{tagv}, v1, {WS}, 0 offen", "epoch")
    k(f"s_cmp_ge_u32 {sC}, 14\ns_cbranch_scc1 L_spare")
    saved_free = set(R.free_); la16_base = la16.base
    k.bg_all()
    a_sig = R.alloc(); a_h = R.alloc(); a_f4 = R.alloc(); a_u = R.alloc(); bsp = R.alloc()
    k(f"""v_and_b32 v{t0}, 19, v0
          v_bfe_u32 v{t1}, v0, 2, 1
          v_lshl_or_b32 v{t0}, v{t1}, 3, v{t0}
          v_bfe_u32 v{t1}, v0, 3, 1
          v_lshl_or_b32 v{a_sig}, v{t1}, 2, v{t0}
          v_and_b32 v{t1}, 32, v0
          v_or_b32 v{t0}, v{a_sig}, v{t1}
          v_lshlrev_b32 v{a_h}, 4, v{t0}
          s_lshl_b32 {sT1}, {sG128}, 2
          s_add_u32 {sT1}, {sT1}, {sW}
          s_lshl_b32 {sT2}, {sT1}, 7
          v_and_b32 v1, 15, v0
          v_lshl_add_u32 v{a_f4}, v1, 2, {sT2}
          s_lshl_b32 {sT2}, {sT1}, 6
          v_lshlrev_b32 v{t0}, 1, v{a_sig}""")
    k.vmem(f"buffer_load_ushort v{bsp}, v{t0}, {BSP}, {sT2} offen", "bsp")
    k(f"""s_mul_i32 {sT2}, {sT1}, {2*28*1024}
          s_lshl_b32 {sT3}, {sC}, 11
          s_add_u32 {sT2}, {sT2}, {sT3}
          s_add_u32 {sT2}, {sT2}, {UB}
          v_lshrrev_b32 v{t0}, 4, v{a_sig}
          v_mul_u32_u24 v{t0}, {28*1024}, v{t0}
          v_lshl_add_u32 v{t0}, v{t1}, 3, v{t0}
          v_and_b32 v1, 15, v{a_sig}
          v_lshlrev_b32 v1, 4, v1
          v_add3_u32 v{a_u}, v{t0}, v1, {sT2}
          v_lshlrev_b32 v{t0}, 3, v{a_sig}
          v_lshl_add_u32 v{a_sig}, v{t1}, 5, v{t0}""")
    hf = R.alloc(128); z2 = R.alloc(32); baug = R.alloc(4); hs = R.alloc(8)
    k.wait(vm="all"); k("s_barrier")
    k.bgq += J(a_win, WIN, 3584, 0, sl_z1, "wz1", [1, 2, 3])
    poll_flag(a_f4, sT0)
    stamp("c")
    k(f"""s_lshl_b32 {sT2}, {sT1}, 11
          s_add_u32 {sT2}, {sT2}, {HS}
          s_lshl_b32 {sT0}, {sT1}, 15
          s_add_u32 {sT0}, {sT0}, {HB}""")
    for u in range(4): k.vmem(f"buffer_load_dwordx2 {vr(hs+2*u,2)}, v{a_sig}, {WS}, {sT2} offen offset:{256*u} sc1", "hs")
    def hload(s):
        def f():
            if s and s % 4 == 0: k(f"s_add_u32 {sT0}, {sT0}, 4096")
            k.vmem(f"buffer_load_dwordx4 {vr(hf+4*s,4)}, v{a_h}, {WS}, {sT0} offen offset:{1024*(s&3)} sc1", ("h", s))
        f.tag = ("h", s)
        return f
    k.bgq = [hload(s) for s in range(32)] + k.bgq
    k.bg(10)
    k.wait(vm="hs")
    pk("add", hs, hs, hs + 2); pk("add", hs + 4, hs + 4, hs + 6); pk("add", st, hs, hs + 4)
    half_allreduce(st, st + 1, "v_add_f32")
    k(f"s_mov_b32 {sT2}, {fhex(1.0/512)}")
    ln_finish(st, st + 1, 512, baug)
    k(f"v_mov_b32 v{st}, v{st+1}")
    R.free(hs, 8)
    la4 = LAddr(k, [t_s4, t_s4 + 1])
    def offs4(sl): return lambda s, jh: sl[s >> 3] * SLOT + ((s >> 1) & 3) * 4096 + jh * 2048 + (s & 1) * 1024
    gemm32([z2, z2 + 16], lambda s: vr(hf+4*s, 4), la4, offs4(sl_z2), lambda s: None, baug, bwait=lambda s: ("h", s), bgevery=1, ahead=1)
    stamp("z2gemm")
    gc = R.alloc(2)
    C1 = -2 * 0.7978845608028654 * LOG2E
    k(f"v_mov_b32 v{gc}, {fhex(C1)}\nv_mov_b32 v{gc+1}, {fhex(C1*0.044715)}")
    def gelu(z):
        t = R.alloc(8)
        for b in range(0, 32, 8):
            for i in range(0, 8, 2): pk("mul", z+b+i, z+b+i, st)
            for i in range(0, 8, 2): pk("mul", t+i, z+b+i, z+b+i)
            for i in range(0, 8, 2): pk("fma", t+i, t+i, gc, gc, "op_sel:[0,1,0] op_sel_hi:[1,1,0]")
            for i in range(0, 8, 2): pk("mul", t+i, t+i, z+b+i)
            k.bg()
            for i in range(8): k(f"v_exp_f32 v{t+i}, v{t+i}")
            for i in range(0, 8, 2): k(f"v_pk_add_f32 {vr(t+i,2)}, {vr(t+i,2)}, 1.0 op_sel_hi:[1,0]")
            for i in range(8): k(f"v_rcp_f32 v{t+i}, v{t+i}")
            k.bg()
            for i in range(0, 8, 2): pk("mul", z+b+i, z+b+i, t+i)
        R.free(t, 8)
    gelu(z2)
    zs = R.alloc(14)
    pk("add", zs, z2, z2 + 2); pk("mul", zs + 2, z2, z2); pk("fma", zs + 2, z2 + 2, z2 + 2, zs + 2)
    for i in range(4, 32, 2):
        pk("add", zs, zs, z2 + i); pk("fma", zs + 2, z2 + i, z2 + i, zs + 2)
    k(f"""v_add_f32 v{zs}, v{zs}, v{zs+1}
          v_add_f32 v{zs+2}, v{zs+2}, v{zs+3}
          v_permlane32_swap_b32 v{zs}, v{zs+2}
          v_add_f32 v{t1}, v{zs}, v{zs+2}""")
    publish([f"buffer_store_dword v{t1}, v{a_zsp}, {WS}, 0 offen"])
    stamp("zspub")
    k(f"""v_and_b32 v{t0}, 31, v0
          v_lshlrev_b32 v{t0}, 3, v{t0}
          v_lshrrev_b32 v1, 5, v0
          v_mul_u32_u24 v1, 1792, v1
          v_add_u32 v{a_zsp}, v{t0}, v1
          s_lshl_b32 {sT2}, {sT1}, 12
          s_add_u32 {sT0}, {sT2}, {ZS}""")
    def chkz():
        k("s_waitcnt vmcnt(0)")
        k(f"v_max_u32 v{t0}, v{zs}, v{zs+1}")
        for u in range(1, 7): k(f"v_max3_u32 v{t0}, v{zs+2*u}, v{zs+2*u+1}, v{t0}")
        k(f"v_cmp_eq_u32 vcc, -1, v{t0}")
    spin([f"buffer_load_dwordx2 {vr(zs+2*u,2)}, v{a_zsp}, {WS}, {sT0} offen offset:{256*u} sc1" for u in range(7)], chkz)
    stamp("d")
    pk("add", zs, zs, zs+2); pk("add", zs+4, zs+4, zs+6); pk("add", zs+8, zs+8, zs+10)
    pk("add", zs, zs, zs+12); pk("add", zs+4, zs+4, zs+8); pk("add", zs, zs, zs+4)
    half_allreduce(zs, zs + 1, "v_add_f32")
    k(f"s_mov_b32 {sT2}, {fhex(1.0/896)}")
    ln_finish(zs, zs + 1, 896, None)
    k(f"v_mul_f32 v{zs}, v{zs}, v{zs+1}")
    zb = R.alloc(16)
    for ft in range(2):
        for i in range(0, 16, 2):
            pk("fma", z2+16*ft+i, z2+16*ft+i, zs, zs, "op_sel:[0,1,0] op_sel_hi:[1,1,0] neg_lo:[0,0,1] neg_hi:[0,0,1]")
        cvt(zb + 8*ft, z2 + 16*ft, 8)
        k(f"{M32} {vr(z2+16*ft,16)}, {vr(zb+8*ft,4)}, {vr(sel,4)}, 0")
        k(f"{M32} {vr(z2+16*ft,16)}, {vr(zb+8*ft+4,4)}, {vr(sel+4,4)}, {vr(z2+16*ft,16)}")
    k(f"""s_lshl_b32 {sT0}, {sC}, 18
          s_lshl_b32 {sT2}, {sT1}, 12
          s_add_u32 {sT0}, {sT0}, {sT2}
          s_add_u32 {sT0}, {sT0}, {Z2N}""")
    for ft in range(2):
        cvt(zb + 8*ft, z2 + 16*ft, 8)
        for ks in range(2):
            k.vmem(f"buffer_store_dwordx4 {vr(zb+8*ft+4*ks,4)}, v{l16}, {WS}, {sT0} offen offset:{(2*ks+ft)*1024} sc1", "z2n")
    k(f"""s_lshr_b32 {sT0}, {sG128}, 3
          s_lshl_b32 {sT2}, {sC}, 1
          s_add_u32 {sT0}, {sT0}, {sT2}
          s_lshl_b32 {sT0}, {sT0}, 5
          s_and_b32 {sT2}, {sG128}, 7
          s_add_u32 {sT0}, {sT0}, {sT2}
          s_lshl_b32 {sT0}, {sT0}, 2
          s_add_u32 {sT0}, {sT0}, {FE}
          s_cmp_eq_u32 {sW}, 0
          s_cselect_b32 {sT0}, {sT0}, {OOB}
          v_mov_b32 v1, {sT0}""")
    k.bg_all()
    k.wait(vm="all"); k("s_barrier")
    k("s_mov_b64 exec, 1")
    k.vmem(f"buffer_store_dword v{tagv}, v1, {WS}, 0 offen sc1", "fe")
    k("s_mov_b64 exec, -1")
    stamp("z2pub")
    R.free(zb, 16); R.free(zs, 14); R.free(a_zsp); R.free(a_sig); R.free(a_h); R.free(sel, 8); R.free(ones, 4)
    a_sp = R.alloc(2, 1); r_sp = R.alloc(4, 1)
    k(f"""v_bfe_u32 v{t0}, v0, 3, 2
          v_lshrrev_b32 v{t1}, 5, v0
          v_lshl_or_b32 v{t0}, v{t1}, 3, v{t0}
          v_lshlrev_b32 v{t0}, 12, v{t0}
          v_lshrrev_b32 v1, 4, v0
          v_xor_b32 v1, v1, v0
          v_and_b32 v1, 7, v1
          v_lshl_or_b32 v{t0}, v1, 4, v{t0}
          s_lshl_b32 {sT0}, {sT1}, 17
          s_and_b32 {sT2}, {sC}, 1
          s_lshl_b32 {sT2}, {sT2}, 11
          s_add_u32 {sT0}, {sT0}, {sT2}
          v_add_u32 v{a_sp}, {sT0}, v{t0}
          v_xor_b32 v{a_sp+1}, 64, v{a_sp}
          v_bfe_u32 v{t0}, v0, 1, 3
          v_xor_b32 v{t0}, v{t0}, v{t1}
          v_lshlrev_b32 v{t0}, 4, v{t0}
          v_and_b32 v1, 31, v0
          v_lshl_or_b32 v{t0}, v1, 7, v{t0}
          s_lshl_b32 {sW1K}, {sW}, 12
          v_add_u32 v{r_sp}, {sW1K}, v{t0}
          v_xor_b32 v{r_sp+1}, 32, v{r_sp}
          v_xor_b32 v{r_sp+2}, 64, v{r_sp}
          v_xor_b32 v{r_sp+3}, 0x60, v{r_sp}""")
    lasp = LAddr(k, [r_sp + i for i in range(4)])
    sl_sp = [1, 2, 3]
    def sp_dma(b):
        return [dma(a_sp + (ii & 1), WSP, (4*(ii & 1) + 16*(ii >> 1)) * 4096 + b * 128, sl_sp[b % 3] * SLOT + ii * 1024, ("sp", b)) for ii in range(4)]
    def sp_rd(b):
        def f():
            k.wait(vm=("sp", b))
            for s in range(4):
                o = lasp.off(sl_sp[b % 3] * SLOT)
                k.ds(f"ds_read_b128 {ar(16*b+4*s,4)}, v{r_sp+s} offset:{o}", ("spr", b))
        return f
    def sp_rel(b): return lambda: k.wait(lg=("spr", b))
    for b in range(16):
        if b >= 3: k.bgq.append(sp_rel(b - 3))
        k.bgq += sp_dma(b)
        if b >= 2: k.bgq.append(sp_rd(b - 2))
    k.bgq += [sp_rd(14), sp_rd(15)]
    k(f"""s_xor_b32 {sT0}, {sC}, 1
          s_lshl_b32 {sT2}, {sG128}, 4
          s_add_u32 {sT0}, {sT0}, {sT2}
          s_lshl_b32 {sT0}, {sT0}, 14
          s_add_u32 {sT0}, {sT0}, {sW1K}
          s_add_u32 s3, {sT0}, {GP}
          v_lshlrev_b32 v{t0}, 6, v0""")
    k.vmem(f"buffer_load_dword v2, v{t0}, {WS}, s3 offen sc1", "touch")
    for o in (0, 512, 1024, 1536): k.vmem(f"buffer_load_dword v2, v{a_u}, {WS}, 0 offen offset:{o} sc1", "touch")
    a_fg = R.alloc(); a_fe = R.alloc()
    k(f"""s_add_u32 {sT0}, {sT2}, {sC}
          s_lshl_b32 {sT0}, {sT0}, 5
          s_add_u32 {sT0}, {sT0}, {sW}
          s_lshl_b32 {sT0}, {sT0}, 2
          s_add_u32 {sT0}, {sT0}, {FG}
          v_mov_b32 v{a_fg}, {sT0}
          s_and_b32 {sT0}, {sC}, 1
          s_and_b32 {sT2}, {sC}, 14
          s_lshl_b32 {sT2}, {sT2}, 1
          s_add_u32 {sT0}, {sT0}, {sT2}
          s_lshl_b32 {sT0}, {sT0}, 7
          s_add_u32 {sT0}, {sT0}, {FE}
          v_bfe_u32 v{t0}, v0, 3, 1
          v_lshlrev_b32 v{t0}, 8, v{t0}
          v_and_b32 v{t1}, 7, v0
          v_lshlrev_b32 v{t1}, 2, v{t1}
          v_add3_u32 v{a_fe}, v{t0}, v{t1}, {sT0}""")
    k.vmem(f"buffer_load_dword v2, v{a_fg}, {WS}, 0 offen sc1", "touch")
    z1 = z2
    gemm32([z1, z1 + 16], lambda s: vr(hf+4*s, 4), la4, offs4(sl_z1), lambda s: None, baug, bgevery=1, ahead=1)
    R.free(hf, 128); R.free(baug, 4)
    gelu(z1)
    stamp("z1")
    k.bg_all()
    R.free(gc, 2); R.free(st, 4); R.free(t_s4, 2); R.free(a_sp, 2); R.free(r_sp, 4); R.free(a_win)
    k.wait(lg="all", vm="all"); k("s_barrier")
    stamp("wsp")
    poll_flag(a_fe, "0")
    stamp("e")
    R.free(a_fe)
    RING = 7 * SLOT; NS = 6
    ga = R.alloc(32); fb = R.alloc(64); pw = R.alloc(32); pb = R.alloc(16); a_ring = R.alloc()
    sZ, sRG = sT0, sT2
    k(f"""s_xor_b32 {sT0}, {sC}, 1
          s_lshl_b32 {sT0}, {sT0}, 18
          s_and_b32 {sT2}, {sC}, 1
          s_lshl_b32 {sT2}, {sT2}, 17
          s_add_u32 {sT0}, {sT0}, {sT2}
          s_lshl_b32 {sRG}, {sW}, 11
          s_add_u32 {sT0}, {sT0}, {sRG}
          s_add_u32 {sZ}, {sT0}, {Z2N}
          s_lshl_b32 {sW1K}, {sW}, 10
          v_add_u32 v{a_ring}, {RING}, v{l16}""")
    def zdma(ch, part):
        if ch >= 32: return
        if part == 0:
            if ch == 16: k(f"s_sub_u32 {sZ}, {sZ}, {15*8192}\ns_xor_b32 {sZ}, {sZ}, {1<<18}")
            elif ch: k(f"s_add_u32 {sZ}, {sZ}, 8192")
            k(f"s_add_u32 m0, {sRG}, {RING + (ch % NS) * 8192}")
        k.vmem(f"buffer_load_dwordx4 v{l16}, {WS}, {sZ} offen offset:{1024*part} sc1 lds", ("z", ch))
    sl_out = [0, 1, 2, 3, 4, 5, 6]
    out_jobs = J(a_w1k, WOUT, 1024, 0, sl_out, "wout", range(7))
    for ch in range(NS): zdma(ch, 0); zdma(ch, 1)
    k.wait(vm=("z", 0)); k("s_barrier")
    for f in range(8): k.ds(f"ds_read_b128 {vr(fb+4*f,4)}, v{a_ring} offset:{f*1024}", "zr")
    k(f"v_lshlrev_b32 v{bsp}, 16, v{bsp}")
    side = []
    for ch in range(32):
        cur = fb + 32 * (ch & 1); nxt = fb + 32 * ((ch + 1) & 1)
        k.wait(vm=("z", ch + 1), lg="all"); k("s_barrier")
        if ch == 16:
            cvt(pb, ga, 16)
            publish([f"buffer_store_dwordx4 {vr(pb+4*q,4)}, v{l16}, {WS}, s3 offen offset:{1024*q}" for q in range(4)])
            k(f"v_xor_b32 v{t0}, 128, v{a_fg}")
        if ch == 18:
            k.wait(vm="pub")
            publish([f"buffer_store_dword v{tagv}, v{t0}, {WS}, 0 offen"])
        if ch == 24:
            keepvm = list(k.vm)
            poll_flag(a_fg, "0")
            k(f"s_xor_b32 s3, s3, {1<<14}")
            for q in range(4): k.vmem(f"buffer_load_dwordx4 {vr(pb+4*q,4)}, v{l16}, {WS}, s3 offen offset:{1024*q} sc1", "pl")
            side += [f"v_mov_b32 v{pw+i}, v{bsp}" for i in range(32)]
        if ch == 27:
            k.wait(vm="pl")
            side += [f"v_dot2c_f32_bf16 v{pw+i}, {sHI if i&1 else sLO}, v{pb+(i>>1)}" for i in range(32)]
            side += [f"v_mul_f32 v{pw+i}, v{pw+i}, v{z1+i}" for i in range(32)]
        for m in range(8):
            ks, ft = m >> 1, m & 1
            first = (ch % 16 == 0 and ks == 0)
            k(f"{M32} {vr(ga+16*ft,16)}, {vr(cur+4*m,4)}, {ar(16*(ch%16)+4*ks,4)}, {0 if first else vr(ga+16*ft,16)}")
            if m < 4 and ch + 1 < 32:
                for f in (2*m, 2*m+1):
                    k.ds(f"ds_read_b128 {vr(nxt+4*f,4)}, v{a_ring} offset:{((ch+1)%NS)*8192+f*1024}", "zr")
            if m == 4: zdma(ch + NS, 0)
            if m == 5: zdma(ch + NS, 1)
            if m == 6 and out_jobs and ch >= 2: out_jobs.pop(0)()
            for _ in range(2 if m < 6 else 4):
                if side: k(side.pop(0))
    assert not side and not out_jobs
    stamp("s6")
    for i in range(0, 32, 2): pk("fma", pw + i, z1 + i, ga + i, pw + i)
    cvt(pb, pw, 16)
    k(f"""s_lshl_b32 {sT0}, {sT1}, 5
          s_add_u32 {sT0}, {sT0}, {sC}
          s_lshl_b32 {sT0}, {sT0}, 2
          s_add_u32 {sT0}, {sT0}, {FF}
          v_mov_b32 v{t0}, {sT0}""")
    publish([f"buffer_store_dwordx4 {vr(pb+4*q,4)}, v{a_u}, {WS}, 0 offen offset:{512*q}" for q in range(4)],
            f"buffer_store_dword v{tagv}, v{t0}, {WS}, 0 offen")
    stamp("upub")
    k("s_branch L_s7")
    k("L_spare:")
    mainvm = list(k.vm); k.vm = []
    k("s_waitcnt vmcnt(0)\ns_barrier")
    for jb in J(a_w1k, WOUT, 1024, 0, sl_out, "wout", range(7)): jb()
    k("s_waitcnt vmcnt(0)")
    if ts:
        for i in range(stamps.index("hpub") + 1, len(stamps)): k(f"s_memrealtime s[{sreg(i)}:{sreg(i)+1}]")
    k.vm = mainvm
    k("L_s7:")
    R.free_ = saved_free; la16.base = la16_base
    k("s_barrier")
    uf = R.alloc(112); acc = R.alloc(16)
    for i in range(8):
        k(f"v_lshlrev_b32 v{acc+2*i}, 16, v{hk+i}\nv_and_b32 v{acc+2*i+1}, 0xffff0000, v{hk+i}")
    k(f"""v_and_b32 v{t0}, 15, v0
          v_min_u32 v{t0}, 13, v{t0}
          v_and_b32 v{a_fl}, 0xffffff80, v{a_fl}
          v_lshl_add_u32 v{a_fl}, v{t0}, 2, v{a_fl}
          s_mov_b32 {sT0}, {FF}""")
    def pre7():
        poll_flag(a_fl, sT0)
        stamp("f")
        k(f"""s_lshl_b32 {sT0}, {sG64}, 2
              s_add_u32 {sT0}, {sT0}, {sW}
              s_mul_i32 {sT0}, {sT0}, {28*1024}
              s_add_u32 {sT0}, {sT0}, {UB}""")
        for s in range(28):
            if s and s % 4 == 0: k(f"s_add_u32 {sT0}, {sT0}, 4096")
            k.vmem(f"buffer_load_dwordx4 {vr(uf+4*s,4)}, v{l16}, {WS}, {sT0} offen offset:{1024*(s&3)} sc1", ("u", s))
    gemm16(acc, 28, lambda s: vr(uf+4*s, 4), lambda s: ("u", s), la16,
           lambda s, jh: sl_out[s >> 2] * SLOT + (s & 3) * 4096 + jh * 512, pre7)
    k(f"""s_mul_i32 {sT0}, {sW}, 2304
          s_add_u32 {sT0}, {sT0}, {RING}
          v_and_b32 v{t0}, 15, v0
          v_mul_u32_u24 v{t0}, 144, v{t0}
          v_lshrrev_b32 v{t1}, 4, v0
          v_lshlrev_b32 v{t1}, 3, v{t1}
          v_add3_u32 v{t0}, v{t0}, v{t1}, {sT0}
          v_lshrrev_b32 v{t1}, 3, v0
          v_mul_u32_u24 v1, 144, v{t1}
          v_and_b32 v2, 7, v0
          v_lshlrev_b32 v2, 4, v2
          v_add3_u32 v1, v1, v2, {sT0}
          v_lshl_add_u32 v2, v{t1}, 10, v2
          s_lshl_b32 {sT0}, {sG64}, 2
          s_add_u32 {sT0}, {sT0}, {sW}
          s_lshl_b32 {sT0}, {sT0}, 14
          s_lshl_b32 {sT1}, {sJ}, 7
          s_add_u32 {sT0}, {sT0}, {sT1}
          s_add_u32 {sT1}, {sT0}, 8192""")
    cvt(hk, acc, 8)
    for T in range(4): k.ds(f"ds_write_b64 v{t0}, {vr(hk+2*T,2)} offset:{32*T}", "ow")
    k.wait(lg="all")
    for u in range(2): k.ds(f"ds_read_b128 {vr(acc+4*u,4)}, v1 offset:{1152*u}", ("or", u))
    for u in range(2):
        k.wait(lg=("or", u))
        k.vmem(f"buffer_store_dwordx4 {vr(acc+4*u,4)}, v2, {OUT}, {sT1 if u else sT0} offen {opt.get('outmod', '')}", "out")
    if ts:
        k("s_waitcnt vmcnt(0)")
        stamp("end")
        k(f"""s_waitcnt lgkmcnt(0)
              s_lshl_b32 {sT0}, s2, 2
              s_add_u32 {sT0}, {sT0}, {sW}
              s_lshl_b32 {sT0}, {sT0}, 7
              s_add_u32 {sT0}, {sT0}, {TS}
              v_mov_b32 v1, 0
              s_mov_b64 exec, 1""")
        for i in range(len(stamps)):
            k(f"v_mov_b32 v2, s{sfinal(i)}\nbuffer_store_dword v2, v1, {WS}, {sT0} offen offset:{4*i}")
        k(f"v_mov_b32 v2, s100\nbuffer_store_dword v2, v1, {WS}, {sT0} offen offset:120")
        k(f"v_mov_b32 v2, {sFAST}\nbuffer_store_dword v2, v1, {WS}, {sT0} offen offset:124")
    if opt.get("wb"): k("s_waitcnt vmcnt(0)\nbuffer_wbl2 sc1\ns_waitcnt vmcnt(0)")
    if opt.get("hold"):
        k(f"""L_hold:
              s_memrealtime s[98:99]
              s_waitcnt lgkmcnt(0)
              s_sub_u32 s98, s98, s100
              s_cmp_lt_u32 s98, {opt["hold"]}
              s_cbranch_scc1 L_hold""")
    k("L_abort:\nL_end:\ns_endpgm")
    for l in tail: k(l)
    k("L_codeend:")
    body = k.text()
    gen.stamps = stamps; gen.hw = R.hw; gen.nops = k.nops_added
    return wrap(body, lds=160*1024, header=HDR)

if __name__ == "__main__":
    open("k1.s", "w").write(gen())
    print("vgpr high water", gen.hw, "nops", gen.nops)
    open("k1_ts.s", "w").write(gen(ts=True))
    import json; json.dump(gen.stamps, open("k1_ts.s.json", "w"))
    open("k1_slow.s", "w").write(gen(force_slow=True))
    open("k1_hold100.s", "w").write(gen(opt={"hold": 10000}))
    open("k1_hold45.s", "w").write(gen(opt={"hold": 4500}))
    open("k1_hold42.s", "w").write(gen(opt={"hold": 4200}))
    open("k1_h_slow.s", "w").write(gen(force_slow=True, opt={"hold": 10000}))
    open("k1_h_slow2.s", "w").write(gen(force_slow=True, opt={"hold": 10000, "outmod": "sc1"}))
    open("k1_h_wb.s", "w").write(gen(opt={"hold": 10000, "wb": 1}))
```
